```python
import torch

def _softmax(x, axis=-1):
    return torch.softmax(x, dim=axis)
def _gelu(x):
    return torch.nn.functional.gelu(x, approximate="tanh")
def _silu(x):
    return torch.nn.functional.silu(x)
def _sigmoid(x):
    return torch.sigmoid(x)
def _layernorm(x, axis=-1, eps=1e-5):
    m = x.mean(dim=axis, keepdim=True)
    v = x.var(dim=axis, keepdim=True, unbiased=False)
    return (x - m) / torch.sqrt(v + eps)
def _scatter_add(tgt, idx, src, axis=0):
    return tgt.clone().index_add_(axis, idx, src)
def _segment_sum(src, seg, n):
    out = torch.zeros((n,) + src.shape[1:], dtype=src.dtype)
    return out.index_add_(0, seg, src)
def _pad(x, pw):
    flat = tuple(v for pair in reversed(pw) for v in pair)
    return torch.nn.functional.pad(x, flat)

kernel_name = 'concat_heads__ssm_conv_s4__spectral_gfnet__prompt'

def setup_inputs():

    _w = (lambda a: (lambda t: t.to(torch.bfloat16) if t.is_floating_point() else t)(torch.as_tensor(a)))
    def _A_setup():
        B, L, D, N = 1, 2048, 1024, 128
        A_re = -(lambda _x: torch.exp(torch.as_tensor(_x)))((lambda *s: torch.randn(*s, dtype=torch.bfloat16) * 3.2)(D, N))
        A_im = torch.pi * (lambda *s: torch.randn(*s, dtype=torch.bfloat16) * 0.05)(D, N)
        B_re = (lambda *s: torch.randn(*s, dtype=torch.bfloat16) * 0.1)(D, N)
        B_im = (lambda *s: torch.randn(*s, dtype=torch.bfloat16) * 0.1)(D, N)
        C_re = (lambda *s: torch.randn(*s, dtype=torch.bfloat16) * 0.1)(D, N)
        C_im = (lambda *s: torch.randn(*s, dtype=torch.bfloat16) * 0.1)(D, N)
        log_dt = (lambda *s: torch.randn(*s, dtype=torch.bfloat16) * 0.05)(D) * 0.5 - 4.0
        Dskip = (lambda *s: torch.randn(*s, dtype=torch.bfloat16) * 0.05)(D)
        return {
            "u": _w((lambda *s: torch.randn(*s, dtype=torch.bfloat16) * 0.05)(B, L, D)),
            "A_re": _w(A_re),
            "A_im": _w(A_im),
            "B_re": _w(B_re),
            "B_im": _w(B_im),
            "C_re": _w(C_re),
            "C_im": _w(C_im),
            "log_dt": _w(log_dt),
            "Dskip": _w(Dskip),
        }
    _A_in = _A_setup()

    def _B_setup():
        B, S, D = 1, 2048, 1024
        Df = D // 2 + 1
        return {
            "x": _w((lambda *s: torch.randn(*s, dtype=torch.bfloat16) * 0.05)(B, S, D)),
            "w_r": _w((lambda *s: torch.randn(*s, dtype=torch.bfloat16) * 0.8)(S, Df) * 0.02),
            "w_i": _w((lambda *s: torch.randn(*s, dtype=torch.bfloat16) * 0.8)(S, Df) * 0.02),
        }
    _B_in = _B_setup()

    return {
        "A_u": _A_in["u"],
        "A_A_re": _A_in["A_re"],
        "A_A_im": _A_in["A_im"],
        "A_B_re": _A_in["B_re"],
        "A_B_im": _A_in["B_im"],
        "A_C_re": _A_in["C_re"],
        "A_C_im": _A_in["C_im"],
        "A_log_dt": _A_in["log_dt"],
        "A_Dskip": _A_in["Dskip"],
        "B_x": _B_in["x"],
        "B_w_r": _B_in["w_r"],
        "B_w_i": _B_in["w_i"],
    }

def reference(A_u, A_A_re, A_A_im, A_B_re, A_B_im, A_C_re, A_C_im, A_log_dt, A_Dskip, B_x, B_w_r, B_w_i):
    def _A_ref(u, A_re, A_im, B_re, B_im, C_re, C_im, log_dt, Dskip):
        Bsz, L, D = u.shape
        dt = torch.exp(log_dt)[:, None]
        A = A_re + 1j * A_im
        Bc = B_re + 1j * B_im
        Cc = C_re + 1j * C_im
        logdA = dt * A
        dB = dt * Bc
        l = (lambda x, dt: x.to(dt))(torch.arange(L), A_re.dtype)
        P = torch.exp(logdA[:, :, None] * l[None, None, :])
        K = torch.einsum("dn,dnl,dn->dl", Cc, P, dB).real
        L2 = 2 * L
        Kp = _pad(K, ((0, 0), (0, L)))
        up = (lambda x, *d: x.permute(*d))(u, 0, 2, 1)
        up = _pad(up, ((0, 0), (0, 0), (0, L)))
        Kf = (lambda x, axes=(-2,-1): torch.fft.rfft2(x.float(), dim=axes))(Kp[:, None, :], axes=(-2, -1))
        Uf = (lambda x, axes=(-2,-1): torch.fft.rfft2(x.float(), dim=axes))(up[:, :, None, :], axes=(-2, -1))
        Yf = Uf * Kf[None, :, :, :]
        y = (lambda x, s, axes=(-2,-1): torch.fft.irfft2(x, s=s, dim=axes).to(torch.bfloat16))(Yf, (1, L2), axes=(-2, -1))[:, :, 0, :L]
        y = (lambda x, *d: x.permute(*d))(y, 0, 2, 1) + u * Dskip[None, None, :]
        return y

    def _B_ref(x, w_r, w_i):
        B, S, D = x.shape
        X = (lambda x, axes=(-2,-1): torch.fft.rfft2(x.float(), dim=axes))(x, axes=(-2, -1))
        W = w_r + 1j * w_i
        X = X * W
        y = (lambda x, s, axes=(-2,-1): torch.fft.irfft2(x, s=s, dim=axes).to(torch.bfloat16))(X, (S, D), axes=(-2, -1))
        return y

    a = _A_ref(A_u, A_A_re, A_A_im, A_B_re, A_B_im, A_C_re, A_C_im, A_log_dt, A_Dskip)
    b = _B_ref(B_x, B_w_r, B_w_i)
    return torch.concatenate([a, b], axis=-1)
```

```python
import re, math, struct

def f2u(x):
    return struct.unpack('<I', struct.pack('<f', x))[0]

TRANS = ('v_exp_f32','v_log_f32','v_rcp_f32','v_rsq_f32','v_sqrt_f32','v_sin_f32','v_cos_f32')

def _regs_of(tok):
    tok = tok.strip()
    m = re.match(r'^-?\|?([vsa])(\d+)\|?$', tok)
    if m: return [m.group(1)+m.group(2)]
    m = re.match(r'^-?\|?([vsa])\[(\d+):(\d+)\]\|?$', tok)
    if m: return [m.group(1)+str(i) for i in range(int(m.group(2)), int(m.group(3))+1)]
    if tok == 'vcc': return ['vcc']
    return []

class Asm:
    def __init__(self):
        self.lines = []
        self.hist = []
        self.lbl = 0
    def raw(self, s):
        self.lines.append(s)
    def comment(self, s):
        self.lines.append('    ; ' + s)
    def label(self, name):
        self.lines.append(name + ':')
        self.hist = [('label', [], [])]*8
        self._after_label = True
    def newlabel(self, pfx='L'):
        self.lbl += 1
        return f'{pfx}_{self.lbl}'
    def nop(self, n):
        while n > 0:
            k = min(n, 16)
            self.lines.append(f'    s_nop {k-1}')
            self.hist.append(('s_nop', [], [], k))
            n -= k
    def _dist(self, pred):
        d = 0
        for h in reversed(self.hist[-24:]):
            if pred(h): return d
            d += h[3] if len(h) > 3 else 1
        return None
    def __call__(self, s):
        s = s.strip()
        op = s.split()[0]
        rest = s[len(op):]
        rest = rest.split(';')[0]
        toks = [t for t in re.split(r',\s*(?![^\[]*\])', rest)]
        toks = [t.strip().split(' ')[0] for t in toks if t.strip()]
        isv = op.startswith('v_')
        dst, src = [], []
        if toks:
            if op.startswith(('buffer_store','ds_write','global_store')):
                for t in toks: src += _regs_of(t)
            elif op.startswith('v_cmp') :
                dst = _regs_of(toks[0])
                for t in toks[1:]: src += _regs_of(t)
            else:
                dst = _regs_of(toks[0])
                for t in toks[1:]: src += _regs_of(t)
                if op in ('v_fmac_f32','v_pk_fmac_f16'): src += dst
        need = 0
        srcset = set(src) | (set(dst) if op.startswith('v_mfma') else set())
        if isv and op not in TRANS:
            d = self._dist(lambda h: h[0] in TRANS and set(h[1]) & set(src))
            if d is not None and d < 1: need = max(need, 1-d)
        def vsg(h): return h[0].startswith('v_') and any(r[0]=='s' or r=='vcc' for r in h[1]) and (set(h[1]) & set(src))
        if isv:
            d = self._dist(vsg)
            if d is not None and d < 2: need = max(need, 2-d)
        if op.startswith(('buffer_','global_')):
            d = self._dist(vsg)
            if d is not None and d < 5: need = max(need, 5-d)
        if op.startswith(('v_readfirstlane','v_readlane')):
            d = self._dist(lambda h: h[0].startswith('v_') and set(h[1]) & set(src))
            if d is not None and d < 1: need = max(need, 1-d)
        if op.startswith('v_mfma'):
            d = self._dist(lambda h: h[0].startswith('v_') and not h[0].startswith('v_mfma') and set(h[1]) & srcset)
            if d is not None and d < 2: need = max(need, 2-d)
        if isv:
            d = self._dist(lambda h: h[0] in ('buffer_store_dwordx4','buffer_store_dwordx3','global_store_dwordx4','global_store_dwordx3') and set(h[2]) & set(dst))
            if d is not None and d < 2: need = max(need, 2-d)
        if not op.startswith('v_mfma') and not op.startswith('s_'):
            def mf(h): return h[0].startswith('v_mfma') and (set(h[1]) & (set(src)|set(dst)))
            for h in reversed(self.hist[-24:]):
                if mf(h):
                    req = 12 if '32x32' in h[0] else 8
                    if 'f32_16x16x4_f32' in h[0]: req = 10
                    if 'f32_32x32x2_f32' in h[0]: req = 18
                    d = self._dist(lambda x: x is h)
                    if d < req: need = max(need, req-d)
                    break
        if need: self.nop(need)
        self.lines.append('    ' + s)
        self.hist.append((op, dst, src, 1))
    def text(self):
        return '\n'.join(self.lines) + '\n'

def vp(r):
    return f'v[{r}:{r+1}]'
def sp(r):
    return f's[{r}:{r+1}]'

class K:
    def __init__(self, a):
        self.a = a
    def cadd(self, d, x, y): self.a(f'v_pk_add_f32 {vp(d)}, {vp(x)}, {vp(y)}')
    def csub(self, d, x, y): self.a(f'v_pk_add_f32 {vp(d)}, {vp(x)}, {vp(y)} neg_lo:[0,1] neg_hi:[0,1]')
    def csub_mi(self, d, x, y):
        self.a(f'v_pk_add_f32 {vp(d)}, {vp(x)}, {vp(y)} op_sel:[1,1] op_sel_hi:[0,0] neg_lo:[0,1] neg_hi:[1,0]')
    def csub_pi(self, d, x, y):
        self.a(f'v_pk_add_f32 {vp(d)}, {vp(x)}, {vp(y)} op_sel:[1,1] op_sel_hi:[0,0] neg_lo:[1,0] neg_hi:[0,1]')
    def cmul(self, d, x, w, t, conj=False, wsg=False):
        W = sp(w) if wsg else vp(w)
        nh = '1' if conj else '0'
        self.a(f'v_pk_mul_f32 {vp(t)}, {vp(x)}, {W} op_sel:[0,0] op_sel_hi:[0,1] neg_hi:[0,{nh}]')
        nl = '0' if conj else '1'
        self.a(f'v_pk_fma_f32 {vp(d)}, {vp(x)}, {W}, {vp(t)} op_sel:[1,1,0] op_sel_hi:[1,0,1] neg_lo:[0,{nl},0]')
    def cmul_const(self, d, x, P, a, b, s1, s2, t):
        n1 = '1' if s1 < 0 else '0'; n2 = '1' if s2 < 0 else '0'; n2i = '0' if s2 < 0 else '1'
        self.a(f'v_pk_mul_f32 {vp(t)}, {vp(x)}, {sp(P)} op_sel:[0,{a}] op_sel_hi:[0,{b}] neg_lo:[0,{n1}] neg_hi:[0,{n2}]')
        self.a(f'v_pk_fma_f32 {vp(d)}, {vp(x)}, {sp(P)}, {vp(t)} op_sel:[1,{b},0] op_sel_hi:[1,{a},1] neg_lo:[0,{n2i},0] neg_hi:[0,{n1},0]')
    def tw_const(self, d, x, R, i, inv, t, S_C8, S_C16):
        ang = -2*math.pi*i/R * (-1 if inv else 1)
        wr, wi = math.cos(ang), math.sin(ang)
        c8 = math.sqrt(.5); c16 = math.cos(math.pi/8); s16 = math.sin(math.pi/8)
        def close(u, v): return abs(abs(u)-v) < 1e-9
        if close(wr, c8) and close(wi, c8):
            self.cmul_const(d, x, S_C8, 0, 1, 1 if wr > 0 else -1, 1 if wi > 0 else -1, t)
        elif close(wr, c16) and close(wi, s16):
            self.cmul_const(d, x, S_C16, 0, 1, 1 if wr > 0 else -1, 1 if wi > 0 else -1, t)
        elif close(wr, s16) and close(wi, c16):
            self.cmul_const(d, x, S_C16, 1, 0, 1 if wr > 0 else -1, 1 if wi > 0 else -1, t)
        else:
            raise ValueError((R, i))
    def fft_regs(self, x, inv, tmp, S_C8, S_C16):
        R = len(x)
        if R == 1: return list(x)
        h = R // 2
        lo, hi = [], []
        for i in range(h):
            a_, b_ = x[i], x[i+h]
            t = tmp[0]
            self.cadd(t, a_, b_)
            if i == 0:
                self.csub(b_, a_, b_)
            elif 4*i == R:
                (self.csub_pi if inv else self.csub_mi)(b_, a_, b_)
            else:
                self.csub(b_, a_, b_)
                self.tw_const(b_, b_, R, i, inv, tmp[1], S_C8, S_C16)
            tmp[0] = a_
            lo.append(t); hi.append(b_)
        e = self.fft_regs(lo, inv, tmp, S_C8, S_C16)
        o = self.fft_regs(hi, inv, tmp, S_C8, S_C16)
        out = [None]*R
        for k in range(h):
            out[2*k] = e[k]; out[2*k+1] = o[k]
        return out

def kernel_header(name):
    return f""".globl {name}
.p2align 8
.type {name},@function
{name}:
"""
def kernel_desc(name, vgpr, sgpr=96, accum=None):
    if accum is None: accum = (vgpr + 3)//4*4
    return f""".amdhsa_kernel {name}
  .amdhsa_next_free_vgpr {vgpr}
  .amdhsa_next_free_sgpr {sgpr}
  .amdhsa_accum_offset {accum}
  .amdhsa_group_segment_fixed_size 0
  .amdhsa_kernarg_size 120
  .amdhsa_user_sgpr_count 2
  .amdhsa_user_sgpr_kernarg_segment_ptr 1
  .amdhsa_system_sgpr_workgroup_id_x 1
.end_amdhsa_kernel
"""
```

```python
from asmlib import *
from kB import srd, build
import math

WS_R = 0x1800000
SZ_R = 1024*2048*2
LOG2E = 1.4426950408889634

def bf16_to_f32(a, d, s):
    a(f'v_lshlrev_b32 v{d}, 16, v{s}')

def gen_kgen(name='kA_kgen_kernel'):
    a = Asm()
    a.raw(kernel_header(name))
    a('s_cmp_ge_u32 s2, 1024')
    a(f's_cbranch_scc1 {name}_end')
    a('s_load_dwordx4 s[16:19], s[0:1], 8')
    a('s_load_dwordx4 s[20:23], s[0:1], 24')
    a('s_load_dwordx4 s[24:27], s[0:1], 40')
    a('s_load_dwordx2 s[28:29], s[0:1], 56')
    a('s_load_dwordx2 s[30:31], s[0:1], 112')
    a('s_waitcnt lgkmcnt(0)')
    for i, b in enumerate((16, 18, 20, 22, 24, 26)):
        srd(a, 32 + 4*i, b, 1024*128*2)
    srd(a, 56, 28, 2048)
    srd(a, 60, 30, SZ_R, WS_R)
    a('v_cmp_gt_u32 vcc, 128, v0')
    a('s_and_saveexec_b64 s[4:5], vcc')
    a(f's_cbranch_execz {name}_p1')
    a('s_lshl_b32 s6, s2, 8')
    a('v_lshlrev_b32 v1, 1, v0')
    for i in range(6):
        a(f'buffer_load_ushort v{2+i}, v1, s[{32+4*i}:{35+4*i}], s6 offen')
    a('s_lshl_b32 s7, s2, 1')
    a('v_mov_b32 v9, 0')
    a('buffer_load_ushort v8, v9, s[56:59], s7 offen')
    a('s_waitcnt vmcnt(0)')
    for i in range(7):
        a(f'v_lshlrev_b32 v{2+i}, 16, v{2+i}')
    a(f'v_mul_f32 v8, {f2u(LOG2E):#x}, v8')
    a('v_exp_f32 v8, v8')
    a('v_cvt_pk_bf16_f32 v8, v8, v8')
    a('v_lshlrev_b32 v8, 16, v8')
    a('v_mul_f32 v2, v8, v2')
    a(f'v_mul_f32 v12, {f2u(LOG2E):#x}, v2')
    a('v_mul_f32 v3, v8, v3')
    a(f'v_mul_f32 v13, {f2u(1/(2*math.pi)):#x}, v3')
    a('v_mul_f32 v4, v8, v4')
    a('v_mul_f32 v5, v8, v5')
    a('v_mul_f32 v14, v6, v4')
    a('v_fma_f32 v14, -v7, v5, v14')
    a('v_mul_f32 v15, v6, v5')
    a('v_fma_f32 v15, v7, v4, v15')
    a('v_lshlrev_b32 v1, 4, v0')
    a('ds_write_b128 v1, v[12:15]')
    a.label(f'{name}_p1')
    a('s_mov_b64 exec, s[4:5]')
    a('s_waitcnt lgkmcnt(0)')
    a('s_barrier')
    L = [20, 21, 22]; ACC = [24, 25, 26]
    a(f'v_cvt_f32_u32 v{L[0]}, v0')
    a('v_add_u32 v1, 128, v0')
    a('v_lshlrev_b32 v1, 1, v1')
    a('v_lshlrev_b32 v2, 2, v0')
    a('v_cmp_gt_u32 vcc, 128, v0')
    a('v_cndmask_b32 v1, v2, v1, vcc')
    a(f'v_cvt_f32_u32 v{L[1]}, v1')
    a('v_add_u32 v1, 128, v0')
    a('v_lshlrev_b32 v1, 3, v1')
    a(f'v_cvt_f32_u32 v{L[2]}, v1')
    for r in ACC: a(f'v_mov_b32 v{r}, 0')
    a('v_mov_b32 v30, 0')
    a('s_mov_b32 s6, 0')
    a.label(f'{name}_loop')
    UN = 4
    for u in range(UN):
        a(f'ds_read_b128 v[{32+4*u}:{35+4*u}], v30 offset:{16*u}')
    a('s_waitcnt lgkmcnt(0)')
    for u in range(UN):
        P = 32 + 4*u
        for i in range(3):
            t = 48 + 4*i
            a(f'v_mul_f32 v{t}, v{P}, v{L[i]}')
            a(f'v_mul_f32 v{t+1}, v{P+1}, v{L[i]}')
            a(f'v_fract_f32 v{t+1}, v{t+1}')
        for i in range(3):
            t = 48 + 4*i
            a(f'v_exp_f32 v{t}, v{t}')
            a(f'v_cos_f32 v{t+2}, v{t+1}')
            a(f'v_sin_f32 v{t+3}, v{t+1}')
        for i in range(3):
            t = 48 + 4*i
            a(f'v_mul_f32 v{t+2}, v{P+2}, v{t+2}')
            a(f'v_fma_f32 v{t+2}, -v{P+3}, v{t+3}, v{t+2}')
            a(f'v_fmac_f32 v{ACC[i]}, v{t}, v{t+2}')
    a(f'v_add_u32 v30, {16*UN}, v30')
    a(f's_add_u32 s6, s6, {UN}')
    a('s_cmp_lt_u32 s6, 128')
    a(f's_cbranch_scc1 {name}_loop')
    a('v_lshlrev_b32 v1, 2, v0')
    for i in range(3):
        a(f'ds_write_b32 v1, v{ACC[i]} offset:{4096 + 1024*i}')
    a('s_waitcnt lgkmcnt(0)')
    a('s_barrier')
    a('v_lshlrev_b32 v1, 3, v0')
    a('v_sub_u32 v1, 2047, v1')
    for j in range(8):
        r = 2 + j
        a(f'v_subrev_u32 v{r}, {j}, v1')
        a(f'v_cvt_f32_u32 v{r}, v{r}')
        a(f'v_cvt_pk_bf16_f32 v{r}, v{r}, v{r}')
        a(f'v_lshlrev_b32 v{r}, 16, v{r}')
        a(f'v_cvt_u32_f32 v{r}, v{r}')
        a(f'v_lshrrev_b32 v12, 1, v{r}')
        a(f'v_add_u32 v12, 128, v12')
        a(f'v_lshrrev_b32 v13, 2, v{r}')
        a(f'v_add_u32 v13, 256, v13')
        a(f'v_lshrrev_b32 v14, 3, v{r}')
        a(f'v_add_u32 v14, 384, v14')
        a(f'v_cmp_lt_u32 vcc, 255, v{r}')
        a(f'v_cndmask_b32 v15, v{r}, v12, vcc')
        a(f'v_cmp_lt_u32 vcc, 511, v{r}')
        a(f'v_cndmask_b32 v15, v15, v13, vcc')
        a(f'v_cmp_lt_u32 vcc, 1023, v{r}')
        a(f'v_cndmask_b32 v15, v15, v14, vcc')
        a(f'v_lshlrev_b32 v15, 2, v15')
        a(f'ds_read_b32 v{r}, v15 offset:4096')
    a('s_waitcnt lgkmcnt(0)')
    for j in range(4):
        a(f'v_cvt_pk_bf16_f32 v{16+j}, v{2+2*j}, v{3+2*j}')
    a('v_lshlrev_b32 v1, 4, v0')
    a('s_lshl_b32 s6, s2, 12')
    a('buffer_store_dwordx4 v[16:19], v1, s[60:63], s6 offen')
    a.label(f'{name}_end')
    a('s_endpgm')
    return a.text(), kernel_desc(name, 64), f'; @launch kernel={name} grid=(1024,1,1) block=(256,1,1) lds={4096+3072}'

RB_ = 4160
UB_ = 4640
L_R = 0
L_U = 4*RB_
L_Y = L_U + 4*UB_
L_TOT = L_Y + 16384

def gen_conv(name='kA_conv_kernel'):
    a = Asm()
    a.raw(kernel_header(name))
    a('s_cmp_ge_u32 s2, 256')
    a(f's_cbranch_scc1 {name}_end')
    a('s_load_dwordx2 s[16:17], s[0:1], 0')
    a('s_load_dwordx2 s[18:19], s[0:1], 64')
    a('s_load_dwordx2 s[20:21], s[0:1], 96')
    a('s_load_dwordx2 s[22:23], s[0:1], 112')
    a('s_and_b32 s3, s2, 7')
    a('s_lshl_b32 s3, s3, 5')
    a('s_lshr_b32 s24, s2, 3')
    a('s_add_u32 s3, s3, s24')
    a('s_lshl_b32 s24, s3, 3')
    a('s_waitcnt lgkmcnt(0)')
    a('s_add_u32 s18, s18, s24')
    a('s_addc_u32 s19, s19, 0')
    a('s_load_dwordx2 s[26:27], s[18:19], 0')
    srd(a, 4, 16, 2048*1024*2)
    srd(a, 8, 20, 2048*2048*2)
    srd(a, 12, 22, SZ_R, WS_R)
    lane, wv = 1, 2
    a(f'v_and_b32 v{lane}, 63, v0')
    a(f'v_lshrrev_b32 v{wv}, 6, v0')
    U = 96
    a('v_lshlrev_b32 v3, 11, v0')
    for i in range(8):
        a(f's_add_u32 s25, s24, {i*256*2048}')
        a(f'buffer_load_dwordx2 v[{U+2*i}:{U+2*i+1}], v3, s[4:7], s25 offen')
    a('s_lshl_b32 s25, s3, 14')
    a(f'v_lshlrev_b32 v4, 12, v{wv}')
    a(f'v_lshl_add_u32 v4, v{lane}, 4, v4')
    for i in range(4):
        a(f'buffer_load_dwordx4 v[{8+4*i}:{11+4*i}], v4, s[12:15], s25 offen offset:{1024*i}')
    a('v_mov_b32 v24, 0'); a('v_mov_b32 v25, 0')
    a(f'v_mul_u32_u24 v5, {RB_}, v{wv}')
    a(f'v_mul_u32_u24 v6, {UB_}, v{wv}')
    a(f'v_lshl_add_u32 v7, v{lane}, 3, v6')
    a(f'ds_write_b64 v7, v[24:25] offset:{L_U}')
    a(f'v_cmp_gt_u32 vcc, 8, v{lane}')
    a('s_and_saveexec_b64 s[28:29], vcc')
    a(f'ds_write_b64 v7, v[24:25] offset:{L_U + 512}')
    a('s_mov_b64 exec, s[28:29]')
    a(f'v_lshl_add_u32 v7, v{lane}, 3, v5')
    a('s_and_saveexec_b64 s[28:29], vcc')
    a(f'ds_write_b64 v7, v[24:25] offset:{L_R + 4096}')
    a('s_mov_b64 exec, s[28:29]')
    a('s_waitcnt lgkmcnt(0)')
    a('s_barrier')
    a('s_waitcnt vmcnt(0)')
    a(f'v_lshl_add_u32 v7, v{lane}, 4, v5')
    for i in range(4):
        a(f'ds_write_b128 v7, v[{8+4*i}:{11+4*i}] offset:{L_R + 1024*i}')
    a('v_lshlrev_b32 v7, 1, v0')
    for i in range(8):
        for ch in range(4):
            r = U + 2*i + (ch >> 1)
            op = 'ds_write_b16_d16_hi' if ch & 1 else 'ds_write_b16'
            a(f'{op} v7, v{r} offset:{L_U + ch*UB_ + 544 + i*512}')
    a('s_waitcnt lgkmcnt(0)')
    a('s_barrier')
    vA, vB = 3, 4
    a(f'v_and_b32 v8, 15, v{lane}')
    a(f'v_lshrrev_b32 v9, 5, v{lane}')
    a(f'v_bfe_u32 v10, v{lane}, 4, 1')
    a('v_lshlrev_b32 v11, 4, v9')
    a('v_add_u32 v11, v11, v8')
    a('v_lshlrev_b32 v12, 3, v10')
    a('v_sub_u32 v11, v12, v11')
    a(f'v_add_u32 v11, {2047 - 32*63}, v11')
    a(f'v_lshl_add_u32 v{vA}, v11, 1, v5')
    a('v_lshlrev_b32 v11, 4, v8')
    a('v_lshlrev_b32 v13, 4, v9')
    a('v_sub_u32 v11, v11, v13')
    a('v_add_u32 v11, v11, v12')
    a('v_add_u32 v11, 16, v11')
    a(f'v_lshl_add_u32 v{vB}, v11, 1, v6')
    ACC = [112 + 4*b for b in range(8)]
    for b in range(8):
        for r in range(4): a(f'v_mov_b32 v{ACC[b]+r}, 0')
    Areg = [8, 12]
    Breg = [[16 + 4*b for b in range(8)], [48 + 4*b for b in range(8)]]
    def blocks(c): return [b for b in range(8) if 16*b + 15 - 2*c >= 0]
    def issue(c):
        s = c & 1
        a(f'ds_read_b128 v[{Areg[s]}:{Areg[s]+3}], v{vA} offset:{L_R + (63-c)*64}')
        for b in blocks(c):
            a(f'ds_read_b128 v[{Breg[s][b]}:{Breg[s][b]+3}], v{vB} offset:{L_U + 2*(256 + 256*b - 32*c)}')
    issue(0)
    for c in range(64):
        s = c & 1
        if c < 63:
            issue(c+1)
            a(f's_waitcnt lgkmcnt({1 + len(blocks(c+1))})')
        else:
            a('s_waitcnt lgkmcnt(0)')
        for b in blocks(c):
            a(f'v_mfma_f32_16x16x32_bf16 v[{ACC[b]}:{ACC[b]+3}], v[{Areg[s]}:{Areg[s]+3}], v[{Breg[s][b]}:{Breg[s][b]+3}], v[{ACC[b]}:{ACC[b]+3}]')
    a(f'v_lshrrev_b32 v9, 4, v{lane}')
    a(f'v_and_b32 v8, 15, v{lane}')
    a('v_lshlrev_b32 v8, 4, v8')
    a('v_lshl_add_u32 v8, v9, 2, v8')
    a(f'v_lshl_add_u32 v8, v8, 2, v{wv}')
    a('v_lshlrev_b32 v8, 1, v8')
    for b in range(8):
        for r in range(0, 4, 2):
            a(f'v_cvt_pk_bf16_f32 v10, v{ACC[b]+r}, v{ACC[b]+r+1}')
            a(f'ds_write_b16 v8, v10 offset:{L_Y + (256*b + r)*8}')
            a(f'ds_write_b16_d16_hi v8, v10 offset:{L_Y + (256*b + r + 1)*8}')
    a('s_waitcnt lgkmcnt(0)')
    a('s_barrier')
    a('v_lshlrev_b32 v3, 3, v0')
    for i in range(8):
        a(f'ds_read_b64 v[{16+2*i}:{17+2*i}], v3 offset:{L_Y + i*2048}')
    a('s_lshl_b32 s32, s26, 16'); a('s_and_b32 s33, s26, 0xffff0000')
    a('s_lshl_b32 s34, s27, 16'); a('s_and_b32 s35, s27, 0xffff0000')
    a('v_lshlrev_b32 v4, 12, v0')
    a('s_waitcnt lgkmcnt(0)')
    for i in range(8):
        for hf in range(2):
            u = U + 2*i + hf; y = 16 + 2*i + hf
            a(f'v_lshlrev_b32 v40, 16, v{u}')
            a(f'v_and_b32 v41, 0xffff0000, v{u}')
            a(f'v_mul_f32 v40, s{32+2*hf}, v40')
            a(f'v_mul_f32 v41, s{33+2*hf}, v41')
            a(f'v_cvt_pk_bf16_f32 v40, v40, v41')
            a(f'v_lshlrev_b32 v41, 16, v40')
            a(f'v_and_b32 v42, 0xffff0000, v40')
            a(f'v_lshlrev_b32 v43, 16, v{y}')
            a(f'v_and_b32 v44, 0xffff0000, v{y}')
            a(f'v_add_f32 v41, v41, v43')
            a(f'v_add_f32 v42, v42, v44')
            a(f'v_cvt_pk_bf16_f32 v{y}, v41, v42')
        a(f's_add_u32 s25, s24, {i*256*4096}')
        a(f'buffer_store_dwordx2 v[{16+2*i}:{17+2*i}], v4, s[8:11], s25 offen')
    a.label(f'{name}_end')
    a('s_endpgm')
    return a.text(), kernel_desc(name, 144), f'; @launch kernel={name} grid=(256,1,1) block=(256,1,1) lds={L_TOT}'

if __name__ == '__main__':
    build([gen_kgen(), gen_conv()], 't_A.s')
```

```python
from asmlib import *
import math

WS_X1T = 0x0000000
WS_Y1T = 0x0900000
WS_WP  = 0x1200000
SZ_XT = 513*2048*8
SZ_WP = 513*2048*4

def srd(a, d, base, size, off=0):
    if off:
        a(f's_add_u32 s{d}, s{base}, {off}')
        a(f's_addc_u32 s{d+1}, s{base+1}, 0')
        a(f's_and_b32 s{d+1}, s{d+1}, 0xffff')
    else:
        a(f's_mov_b32 s{d}, s{base}')
        a(f's_and_b32 s{d+1}, s{base+1}, 0xffff')
    a(f's_mov_b32 s{d+2}, {size}')
    a(f's_mov_b32 s{d+3}, 0x00020000')

def consts(a, S_C8, S_C16):
    c8 = f2u(math.sqrt(.5))
    a(f's_mov_b32 s{S_C8}, {c8:#x}'); a(f's_mov_b32 s{S_C8+1}, {c8:#x}')
    a(f's_mov_b32 s{S_C16}, {f2u(math.cos(math.pi/8)):#x}'); a(f's_mov_b32 s{S_C16+1}, {f2u(math.sin(math.pi/8)):#x}')

def sincos(a, d, ang):
    a(f'v_cos_f32 v{d}, v{ang}')
    a(f'v_sin_f32 v{d+1}, v{ang}')

RS = 4640

def fft512_wave(a, k, rows, tw1, tw2, tmp, vbase_w1, vbase_r1, vbase_w2, vbase_r2, inv, S_C8, S_C16):
    cur = []
    for regs, off in rows:
        o = k.fft_regs(regs, inv, tmp, S_C8, S_C16)
        for k0 in range(1, 8):
            k.cmul(o[k0], o[k0], tw1[k0], tmp[1], conj=inv)
        for k0 in range(8):
            a(f'ds_write_b64 v{vbase_w1}, {vp(o[k0])} offset:{off + k0*576}')
        cur.append(o)
    a('s_waitcnt lgkmcnt(0)')
    nxt = []
    for (regs, off), o in zip(rows, cur):
        for n1 in range(8):
            a(f'ds_read_b64 {vp(o[n1])}, v{vbase_r1} offset:{off + n1*64}')
    a('s_waitcnt lgkmcnt(0)')
    cur2 = []
    for (regs, off), o in zip(rows, cur):
        o2 = k.fft_regs(o, inv, tmp, S_C8, S_C16)
        for k1 in range(1, 8):
            k.cmul(o2[k1], o2[k1], tw2[k1], tmp[1], conj=inv)
        for k1 in range(8):
            a(f'ds_write_b64 v{vbase_w2}, {vp(o2[k1])} offset:{off + k1*520}')
        cur2.append(o2)
    a('s_waitcnt lgkmcnt(0)')
    for (regs, off), o in zip(rows, cur2):
        for n0 in range(8):
            a(f'ds_read_b64 {vp(o[n0])}, v{vbase_r2} offset:{off + n0*8}')
    a('s_waitcnt lgkmcnt(0)')
    outs = []
    for (regs, off), o in zip(rows, cur2):
        outs.append(k.fft_regs(o, inv, tmp, S_C8, S_C16))
    return outs

def fft512_setup(a, lane, tw1, tw2, vt, vw1, vr1, vw2, vr2, vrowbase):
    a(f'v_cvt_f32_u32 v{vt}, v{lane}')
    for k0 in range(1, 8):
        a(f'v_mul_f32 v{vt+1}, {f2u(-k0/512.):#x}, v{vt}')
        sincos(a, tw1[k0], vt+1)
    a(f'v_and_b32 v{vt+2}, 7, v{lane}')
    a(f'v_cvt_f32_u32 v{vt}, v{vt+2}')
    for k1 in range(1, 8):
        a(f'v_mul_f32 v{vt+1}, {f2u(-k1/64.):#x}, v{vt}')
        sincos(a, tw2[k1], vt+1)
    a(f'v_lshl_add_u32 v{vw1}, v{lane}, 3, v{vrowbase}')
    a(f'v_lshrrev_b32 v{vt}, 3, v{lane}')
    a(f'v_mul_u32_u24 v{vt+1}, 576, v{vt}')
    a(f'v_lshl_add_u32 v{vr1}, v{vt+2}, 3, v{vt+1}')
    a(f'v_add_u32 v{vr1}, v{vr1}, v{vrowbase}')
    a(f'v_mov_b32 v{vw2}, v{vw1}')
    a(f'v_mul_u32_u24 v{vt+1}, 520, v{vt}')
    a(f'v_lshl_add_u32 v{vr2}, v{vt+2}, 6, v{vt+1}')
    a(f'v_add_u32 v{vr2}, v{vr2}, v{vrowbase}')

def gen_row(name='kB_row_kernel'):
    a = Asm(); k = K(a)
    a.raw(kernel_header(name))
    S_C8, S_C16 = 12, 14
    a('s_cmp_ge_u32 s2, 256')
    a(f's_cbranch_scc1 {name}_end')
    a('s_load_dwordx2 s[16:17], s[0:1], 72')
    a('s_load_dwordx2 s[18:19], s[0:1], 112')
    consts(a, S_C8, S_C16)
    lane, wv = 1, 2
    a(f'v_and_b32 v{lane}, 63, v0')
    a(f'v_lshrrev_b32 v{wv}, 6, v0')
    RA = list(range(8, 24, 2)); RB = list(range(24, 40, 2))
    tmp = [40, 42]
    tw1 = {i: 44 + 2*(i-1) for i in range(1, 8)}
    tw2 = {i: 58 + 2*(i-1) for i in range(1, 8)}
    vt = 72
    vw1, vr1, vw2, vr2, vrb = 76, 77, 78, 79, 80
    vg = 81
    a(f'v_mul_u32_u24 v{vrb}, {2*RS}, v{wv}')
    a('s_waitcnt lgkmcnt(0)')
    srd(a, 4, 16, 2048*1024*2)
    srd(a, 8, 18, SZ_XT, WS_X1T)
    a(f's_lshl_b32 s20, s2, 14')
    a(f'v_lshlrev_b32 v{vg}, 12, v{wv}')
    a(f'v_lshl_add_u32 v{vg}, v{lane}, 2, v{vg}')
    for r, R in enumerate((RA, RB)):
        for j in range(8):
            a(f'buffer_load_dword v{R[j]+1}, v{vg}, s[4:7], s20 offen offset:{r*2048 + j*256}')
    fft512_setup(a, lane, tw1, tw2, vt, vw1, vr1, vw2, vr2, vrb)
    a('s_waitcnt vmcnt(0)')
    for R in (RA, RB):
        for j in range(8):
            a(f'v_lshlrev_b32 v{R[j]}, 16, v{R[j]+1}')
            a(f'v_and_b32 v{R[j]+1}, 0xffff0000, v{R[j]+1}')
    outs = fft512_wave(a, k, [(RA, 0), (RB, RS)], tw1, tw2, tmp, vw1, vr1, vw2, vr2, False, S_C8, S_C16)
    for r, o in enumerate(outs):
        for k2 in range(8):
            a(f'ds_write_b64 v{vw1}, {vp(o[k2])} offset:{r*RS + k2*512}')
    a(f'v_cmp_eq_u32 vcc, 0, v{lane}')
    a('s_and_saveexec_b64 s[22:23], vcc')
    for r, o in enumerate(outs):
        a(f'ds_write_b64 v{vw1}, {vp(o[0])} offset:{r*RS + 4096}')
    a('s_mov_b64 exec, s[22:23]')
    a('s_waitcnt lgkmcnt(0)')
    a('s_barrier')
    row, f0, vA, vB, vO, ang = 8, 9, 10, 11, 12, 13
    a(f'v_and_b32 v{row}, 7, v0')
    a(f'v_lshrrev_b32 v{f0}, 3, v0')
    a(f'v_mul_u32_u24 v{vA}, {RS}, v{row}')
    a(f'v_lshlrev_b32 v{vB}, 3, v{f0}')
    a(f'v_sub_u32 v{vB}, v{vA}, v{vB}')
    a(f'v_lshl_add_u32 v{vA}, v{f0}, 3, v{vA}')
    a(f'v_lshlrev_b32 v{vO}, 14, v{f0}')
    a(f'v_lshl_add_u32 v{vO}, v{row}, 3, v{vO}')
    a(f's_lshl_b32 s20, s2, 6')
    a(f'v_add_u32 v{vO}, s20, v{vO}')
    a(f'v_cvt_f32_u32 v{ang}, v{f0}')
    a(f'v_mul_f32 v{ang}, {f2u(-1/1024.):#x}, v{ang}')
    NB = 4
    regsA = [16 + 2*i for i in range(NB)]; regsB = [24 + 2*i for i in range(NB)]
    regsW = [32 + 2*i for i in range(NB)]; regsT = [40 + 2*i for i in range(NB)]; regsE = [48 + 2*i for i in range(NB)]
    va = 56
    def body(ilist):
        for b, i in enumerate(ilist):
            a(f'ds_read_b64 {vp(regsA[b])}, v{vA} offset:{i*256}')
            a(f'ds_read_b64 {vp(regsB[b])}, v{vB} offset:{4096 - i*256}')
        for b, i in enumerate(ilist):
            a(f'v_add_f32 v{va+b}, {f2u(-i/32.):#x}, v{ang}')
        for b, i in enumerate(ilist):
            sincos(a, regsW[b], va+b)
        a('s_waitcnt lgkmcnt(0)')
        for b, i in enumerate(ilist):
            A, B = regsA[b], regsB[b]
            a(f'v_pk_add_f32 {vp(regsE[b])}, {vp(A)}, {vp(B)} neg_hi:[0,1]')
            a(f'v_pk_add_f32 {vp(A)}, {vp(A)}, {vp(B)} op_sel:[1,1] op_sel_hi:[0,0] neg_hi:[1,0]')
            k.cmul(B, A, regsW[b], regsT[b])
            k.cadd(regsE[b], regsE[b], B)
        for b, i in enumerate(ilist):
            a(f's_mov_b32 s21, {i*32*16384}')
            a(f'buffer_store_dwordx2 {vp(regsE[b])}, v{vO}, s[8:11], s21 offen')
    for i0 in range(0, 16, NB):
        body(list(range(i0, i0+NB)))
    a(f'v_cmp_gt_u32 vcc, 8, v0')
    a('s_and_saveexec_b64 s[22:23], vcc')
    a(f's_cbranch_execz {name}_end')
    body([16])
    a.label(f'{name}_end')
    a('s_endpgm')
    return a.text(), kernel_desc(name, 88), f'; @launch kernel={name} grid=(256,1,1) block=(256,1,1) lds={8*RS}'

def build(parts, path):
    hdr = ''.join(p[2] + '\n' for p in parts)
    txt = hdr + '.amdgcn_target "amdgcn-amd-amdhsa--gfx950"\n.text\n'
    for p in parts: txt += p[0]
    txt += '.section .rodata,"a"\n.p2align 6\n'
    for p in parts: txt += p[1]
    open(path, 'w').write(txt)

if __name__ == '__main__':
    build([gen_row()], 't_row.s')
```

```python
from asmlib import *
from kB import *

CB, CS = 1216, 72

def gen_col(name='kB_col_kernel'):
    a = Asm(); k = K(a)
    a.raw(kernel_header(name))
    S_C8, S_C16 = 12, 14
    a('s_cmp_ge_u32 s2, 513')
    a(f's_cbranch_scc1 {name}_end')
    a('s_load_dwordx2 s[18:19], s[0:1], 112')
    consts(a, S_C8, S_C16)
    a(f's_mov_b32 s28, {f2u(2.0**-22):#x}'); a(f's_mov_b32 s29, {f2u(2.0**-22):#x}')
    X = list(range(8, 40, 2)); tmp = [40, 42]
    tw1 = {i: 44 + 2*(i-1) for i in range(1, 16)}
    tw2 = {i: 74 + 2*(i-1) for i in range(1, 16)}
    Wv = 104
    vt = 120
    vg, vw1, vr1, vr2, vwp = 123, 124, 125, 126, 127
    a('s_waitcnt lgkmcnt(0)')
    srd(a, 4, 18, SZ_XT, WS_X1T)
    srd(a, 8, 18, SZ_XT, WS_Y1T)
    srd(a, 20, 18, SZ_WP, WS_WP)
    a(f'v_lshlrev_b32 v{vg}, 3, v0')
    a('s_lshl_b32 s24, s2, 14')
    for q in range(4):
        a(f's_add_u32 s{30+q}, s24, {q*4096}')
    for n2 in range(16):
        a(f'buffer_load_dwordx2 {vp(X[n2])}, v{vg}, s[4:7], s{30 + n2//4} offen offset:{(n2%4)*1024}')
    a(f'v_lshlrev_b32 v{vwp}, 6, v0')
    a('s_lshl_b32 s25, s2, 13')
    for q in range(4):
        a(f'buffer_load_dwordx4 v[{Wv+4*q}:{Wv+4*q+3}], v{vwp}, s[20:23], s25 offen offset:{16*q}')
    a(f'v_cvt_f32_u32 v{vt}, v0')
    for i in range(1, 16):
        a(f'v_mul_f32 v{vt+1}, {f2u(-i/2048.):#x}, v{vt}')
        sincos(a, tw1[i], vt+1)
    a(f'v_and_b32 v{vt+2}, 7, v0')
    a(f'v_cvt_f32_u32 v{vt}, v{vt+2}')
    for i in range(1, 16):
        a(f'v_mul_f32 v{vt+1}, {f2u(-i/128.):#x}, v{vt}')
        sincos(a, tw2[i], vt+1)
    a(f'v_mov_b32 v{vw1}, v{vg}')
    a(f'v_lshrrev_b32 v{vt}, 3, v0')
    a(f'v_mul_u32_u24 v{vt}, {CB}, v{vt}')
    a(f'v_lshl_add_u32 v{vr1}, v{vt+2}, 3, v{vt}')
    a(f'v_mul_u32_u24 v{vr2}, {CS}, v{vt+2}')
    a(f'v_add_u32 v{vr2}, v{vr2}, v{vt}')
    a('s_waitcnt vmcnt(4)')
    o = k.fft_regs(X, False, tmp, S_C8, S_C16)
    for i in range(1, 16): k.cmul(o[i], o[i], tw1[i], tmp[1])
    for i in range(16): a(f'ds_write_b64 v{vw1}, {vp(o[i])} offset:{i*CB}')
    a('s_waitcnt lgkmcnt(0)')
    a('s_barrier')
    for i in range(16): a(f'ds_read_b64 {vp(o[i])}, v{vr1} offset:{i*64}')
    a('s_waitcnt lgkmcnt(0)')
    o = k.fft_regs(o, False, tmp, S_C8, S_C16)
    for i in range(1, 16): k.cmul(o[i], o[i], tw2[i], tmp[1])
    for i in range(16): a(f'ds_write_b64 v{vr1}, {vp(o[i])} offset:{i*CS}')
    a('s_waitcnt lgkmcnt(0)')
    for h in range(2):
        for n0 in range(8):
            a(f'ds_read_b64 {vp(o[8*h+n0])}, v{vr2} offset:{h*8*CS + n0*8}')
    a('s_waitcnt lgkmcnt(0)')
    hs = [k.fft_regs(o[8*h:8*h+8], False, tmp, S_C8, S_C16) for h in range(2)]
    a('s_waitcnt vmcnt(0)')
    wt = vt
    for h in range(2):
        for k2 in range(8):
            w = Wv + 8*h + k2
            a(f'v_lshlrev_b32 v{wt}, 16, v{w}')
            a(f'v_and_b32 v{wt+1}, 0xffff0000, v{w}')
            a(f'v_pk_mul_f32 {vp(wt)}, {vp(wt)}, s[28:29]')
            k.cmul(hs[h][k2], hs[h][k2], wt, tmp[1])
    hs = [k.fft_regs(hs[h], True, tmp, S_C8, S_C16) for h in range(2)]
    for h in range(2):
        for n0 in range(8):
            a(f'ds_write_b64 v{vr2}, {vp(hs[h][n0])} offset:{h*8*CS + n0*8}')
    o = hs[0] + hs[1]
    a('s_waitcnt lgkmcnt(0)')
    for i in range(16): a(f'ds_read_b64 {vp(o[i])}, v{vr1} offset:{i*CS}')
    a('s_waitcnt lgkmcnt(0)')
    for i in range(1, 16): k.cmul(o[i], o[i], tw2[i], tmp[1], conj=True)
    o = k.fft_regs(o, True, tmp, S_C8, S_C16)
    for i in range(16): a(f'ds_write_b64 v{vr1}, {vp(o[i])} offset:{i*64}')
    a('s_waitcnt lgkmcnt(0)')
    a('s_barrier')
    for i in range(16): a(f'ds_read_b64 {vp(o[i])}, v{vw1} offset:{i*CB}')
    a('s_waitcnt lgkmcnt(0)')
    for i in range(1, 16): k.cmul(o[i], o[i], tw1[i], tmp[1], conj=True)
    o = k.fft_regs(o, True, tmp, S_C8, S_C16)
    for n2 in range(16):
        a(f'buffer_store_dwordx2 {vp(o[n2])}, v{vg}, s[8:11], s{30 + n2//4} offen offset:{(n2%4)*1024}')
    a.label(f'{name}_end')
    a('s_endpgm')
    return a.text(), kernel_desc(name, 128), f'; @launch kernel={name} grid=(513,1,1) block=(128,1,1) lds={16*CB}'

def gen_wprep(name='kB_wprep_kernel'):
    a = Asm()
    a.raw(kernel_header(name))
    a('s_cmp_ge_u32 s2, 144')
    a(f's_cbranch_scc1 {name}_end')
    a('s_load_dwordx2 s[16:17], s[0:1], 80')
    a('s_load_dwordx2 s[18:19], s[0:1], 88')
    a('s_load_dwordx2 s[24:25], s[0:1], 112')
    a('s_and_b32 s26, s2, 15')
    a('s_lshr_b32 s27, s2, 4')
    lane, wv = 1, 2
    a(f'v_and_b32 v{lane}, 63, v0')
    a(f'v_lshrrev_b32 v{wv}, 6, v0')
    a('s_waitcnt lgkmcnt(0)')
    srd(a, 4, 16, 2048*513*2)
    srd(a, 8, 18, 2048*513*2)
    srd(a, 12, 24, SZ_WP, WS_WP)
    vg, vl = 3, 4
    a('s_mul_i32 s28, s26, 1026')
    a('s_lshl_b32 s29, s27, 7')
    a('s_add_u32 s28, s28, s29')
    a(f'v_mul_u32_u24 v{vg}, {16*1026}, v{wv}')
    a(f'v_lshl_add_u32 v{vg}, v{lane}, 1, v{vg}')
    a(f'v_mul_u32_u24 v{vl}, 516, v{lane}')
    a(f'v_lshl_add_u32 v{vl}, v{wv}, 6, v{vl}')
    for i0 in range(0, 32, 8):
        for j in range(8):
            i = i0 + j
            a(f's_add_u32 s30, s28, {i*64*1026}')
            a(f'buffer_load_ushort v{8+j}, v{vg}, s[4:7], s30 offen')
            a(f'buffer_load_ushort v{16+j}, v{vg}, s[8:11], s30 offen')
        a('s_waitcnt vmcnt(0)')
        for j in range(8):
            i = i0 + j
            a(f'v_lshl_or_b32 v{8+j}, v{16+j}, 16, v{8+j}')
            p = (4*(i & 1))*16 + ((i & 3) >> 1)*8 + (i >> 2)
            a(f'ds_write_b32 v{vl}, v{8+j} offset:{p*4}')
    a('s_waitcnt lgkmcnt(0)')
    a('s_barrier')
    vr, vo = 5, 6
    a(f'v_lshrrev_b32 v7, 5, v0')
    a(f'v_and_b32 v24, 31, v0')
    a(f'v_mul_u32_u24 v{vr}, 516, v7')
    a(f'v_lshl_add_u32 v{vr}, v24, 4, v{vr}')
    a(f'v_lshlrev_b32 v{vo}, 13, v7')
    a(f'v_lshl_add_u32 v{vo}, v24, 4, v{vo}')
    a('s_lshl_b32 s28, s27, 19')
    a('s_lshl_b32 s29, s26, 9')
    a('s_add_u32 s28, s28, s29')
    for i in range(8):
        a(f'ds_read_b128 v[{32+4*i}:{35+4*i}], v{vr} offset:{i*8*516}')
    a('s_waitcnt lgkmcnt(0)')
    for i in range(8):
        a(f's_add_u32 s30, s28, {i*8*8192}')
        a(f'buffer_store_dwordx4 v[{32+4*i}:{35+4*i}], v{vo}, s[12:15], s30 offen')
    a.label(f'{name}_end')
    a('s_endpgm')
    return a.text(), kernel_desc(name, 64), f'; @launch kernel={name} grid=(144,1,1) block=(256,1,1) lds={64*516}'

def gen_irow(name='kB_irow_kernel'):
    a = Asm(); k = K(a)
    a.raw(kernel_header(name))
    S_C8, S_C16 = 12, 14
    a('s_cmp_ge_u32 s2, 256')
    a(f's_cbranch_scc1 {name}_end')
    a('s_load_dwordx2 s[16:17], s[0:1], 96')
    a('s_load_dwordx2 s[18:19], s[0:1], 112')
    consts(a, S_C8, S_C16)
    lane, wv = 1, 2
    a(f'v_and_b32 v{lane}, 63, v0')
    a(f'v_lshrrev_b32 v{wv}, 6, v0')
    a('s_waitcnt lgkmcnt(0)')
    srd(a, 4, 16, 2048*2048*2)
    srd(a, 8, 18, SZ_XT, WS_Y1T)
    row, f0, vL, vO = 8, 9, 10, 11
    a(f'v_and_b32 v{row}, 7, v0')
    a(f'v_lshrrev_b32 v{f0}, 3, v0')
    a(f'v_mul_u32_u24 v{vL}, {RS}, v{row}')
    a(f'v_lshl_add_u32 v{vL}, v{f0}, 3, v{vL}')
    a(f'v_lshlrev_b32 v{vO}, 14, v{f0}')
    a(f'v_lshl_add_u32 v{vO}, v{row}, 3, v{vO}')
    a(f's_lshl_b32 s20, s2, 6')
    a(f'v_add_u32 v{vO}, s20, v{vO}')
    for i in range(16):
        a(f's_mov_b32 s21, {i*32*16384}')
        a(f'buffer_load_dwordx2 {vp(16+2*i)}, v{vO}, s[8:11], s21 offen')
    a(f's_mov_b32 s21, {16*32*16384}')
    a(f'buffer_load_dwordx2 {vp(48)}, v{vO}, s[8:11], s21 offen')
    a('s_waitcnt vmcnt(0)')
    a(f'v_cmp_gt_u32 vcc, 8, v0')
    a(f'v_cndmask_b32 v17, v17, 0, vcc')
    a(f'v_mov_b32 v49, 0')
    for i in range(16):
        a(f'ds_write_b64 v{vL}, {vp(16+2*i)} offset:{i*256}')
    a('s_and_saveexec_b64 s[22:23], vcc')
    a(f'ds_write_b64 v{vL}, {vp(48)} offset:4096')
    a('s_mov_b64 exec, s[22:23]')
    a('s_waitcnt lgkmcnt(0)')
    a('s_barrier')
    RA = list(range(8, 24, 2)); RB = list(range(24, 40, 2))
    tmp = [40, 42]
    tw1 = {i: 44 + 2*(i-1) for i in range(1, 8)}
    tw2 = {i: 58 + 2*(i-1) for i in range(1, 8)}
    vt = 72
    vw1, vr1, vw2, vr2, vrb = 76, 77, 78, 79, 80
    vB = 81; vg = 82
    a(f'v_mul_u32_u24 v{vrb}, {2*RS}, v{wv}')
    fft512_setup(a, lane, tw1, tw2, vt, vw1, vr1, vw2, vr2, vrb)
    a(f'v_lshlrev_b32 v{vB}, 3, v{lane}')
    a(f'v_sub_u32 v{vB}, v{vrb}, v{vB}')
    a(f'v_cvt_f32_u32 v{vt}, v{lane}')
    a(f'v_mul_f32 v{vt}, {f2u(1/1024.):#x}, v{vt}')
    Bt = [84, 86]; Wt = 88; Tt = 90
    for j in range(8):
        for r, R in enumerate((RA, RB)):
            a(f'ds_read_b64 {vp(R[j])}, v{vw1} offset:{r*RS + j*512}')
            a(f'ds_read_b64 {vp(Bt[r])}, v{vB} offset:{r*RS + 4096 - j*512}')
        a(f'v_add_f32 v{vt+1}, {f2u(j/16.):#x}, v{vt}')
        sincos(a, Wt, vt+1)
        a('s_waitcnt lgkmcnt(0)')
        for r, R in enumerate((RA, RB)):
            A, B = R[j], Bt[r]
            a(f'v_pk_add_f32 {vp(Tt)}, {vp(A)}, {vp(B)} neg_lo:[0,1]')
            a(f'v_pk_add_f32 {vp(A)}, {vp(A)}, {vp(B)} neg_hi:[0,1]')
            k.cmul(B, Tt, Wt, tmp[0])
            a(f'v_pk_add_f32 {vp(A)}, {vp(A)}, {vp(B)} op_sel:[0,1] op_sel_hi:[1,0] neg_lo:[0,1]')
    outs = fft512_wave(a, k, [(RA, 0), (RB, RS)], tw1, tw2, tmp, vw1, vr1, vw2, vr2, True, S_C8, S_C16)
    a(f'v_lshlrev_b32 v{vg}, 13, v{wv}')
    a(f'v_lshl_add_u32 v{vg}, v{lane}, 2, v{vg}')
    a('s_lshl_b32 s20, s2, 15')
    a('s_add_u32 s21, s20, 4096')
    for r, o in enumerate(outs):
        for j in range(8):
            a(f'v_cvt_pk_bf16_f32 v{o[j]}, v{o[j]}, v{o[j]+1}')
            a(f'buffer_store_dword v{o[j]}, v{vg}, s[4:7], s{20+r} offen offset:{2048 + j*256}')
    a.label(f'{name}_end')
    a('s_endpgm')
    return a.text(), kernel_desc(name, 96), f'; @launch kernel={name} grid=(256,1,1) block=(256,1,1) lds={8*RS}'

if __name__ == '__main__':
    build([gen_row(), gen_wprep(), gen_col(), gen_irow()], 't_B.s')
```

```python
from kB import *
from kB2 import *
from kA import *
import sys
out = sys.argv[1] if len(sys.argv) > 1 else 'concat_heads__ssm_conv_s4__spectral_gfnet__prompt.s'
build([gen_kgen(), gen_row(), gen_wprep(), gen_col(), gen_conv(), gen_irow()], out)
```

```python
import re, math, struct

def f2u(x):
    return struct.unpack('<I', struct.pack('<f', x))[0]

TRANS = ('v_exp_f32','v_log_f32','v_rcp_f32','v_rsq_f32','v_sqrt_f32','v_sin_f32','v_cos_f32')

def _regs_of(tok):
    tok = tok.strip()
    m = re.match(r'^-?\|?([vsa])(\d+)\|?$', tok)
    if m: return [m.group(1)+m.group(2)]
    m = re.match(r'^-?\|?([vsa])\[(\d+):(\d+)\]\|?$', tok)
    if m: return [m.group(1)+str(i) for i in range(int(m.group(2)), int(m.group(3))+1)]
    if tok == 'vcc': return ['vcc']
    return []

class Asm:
    def __init__(self):
        self.lines = []
        self.hist = []
        self.lbl = 0
    def raw(self, s):
        self.lines.append(s)
    def comment(self, s):
        self.lines.append('    ; ' + s)
    def label(self, name):
        self.lines.append(name + ':')
        self.hist = [('label', [], [])]*8
        self._after_label = True
    def newlabel(self, pfx='L'):
        self.lbl += 1
        return f'{pfx}_{self.lbl}'
    def nop(self, n):
        while n > 0:
            k = min(n, 16)
            self.lines.append(f'    s_nop {k-1}')
            self.hist.append(('s_nop', [], [], k))
            n -= k
    def _dist(self, pred):
        d = 0
        for h in reversed(self.hist[-24:]):
            if pred(h): return d
            d += h[3] if len(h) > 3 else 1
        return None
    def __call__(self, s):
        s = s.strip()
        op = s.split()[0]
        rest = s[len(op):]
        rest = rest.split(';')[0]
        toks = [t for t in re.split(r',\s*(?![^\[]*\])', rest)]
        toks = [t.strip().split(' ')[0] for t in toks if t.strip()]
        isv = op.startswith('v_')
        if op.startswith('buffer_'):
            mo = re.search(r'offset:(\d+)', s)
            assert not mo or int(mo.group(1)) < 4096, s
        if op.startswith('ds_'):
            mo = re.search(r'offset:(\d+)', s)
            assert not mo or int(mo.group(1)) < 65536, s
        dst, src = [], []
        if toks:
            if op.startswith(('buffer_store','ds_write','global_store')):
                for t in toks: src += _regs_of(t)
            elif op.startswith('v_cmp') :
                dst = _regs_of(toks[0])
                for t in toks[1:]: src += _regs_of(t)
            else:
                dst = _regs_of(toks[0])
                for t in toks[1:]: src += _regs_of(t)
                if op in ('v_fmac_f32','v_pk_fmac_f16'): src += dst
        need = 0
        srcset = set(src) | (set(dst) if op.startswith('v_mfma') else set())
        if isv and op not in TRANS:
            d = self._dist(lambda h: h[0] in TRANS and set(h[1]) & set(src))
            if d is not None and d < 1: need = max(need, 1-d)
        def vsg(h): return h[0].startswith('v_') and any(r[0]=='s' or r=='vcc' for r in h[1]) and (set(h[1]) & set(src))
        if isv:
            d = self._dist(vsg)
            if d is not None and d < 2: need = max(need, 2-d)
        if op.startswith(('buffer_','global_')):
            d = self._dist(vsg)
            if d is not None and d < 5: need = max(need, 5-d)
        if op.startswith(('v_readfirstlane','v_readlane')):
            d = self._dist(lambda h: h[0].startswith('v_') and set(h[1]) & set(src))
            if d is not None and d < 1: need = max(need, 1-d)
        if op.startswith('v_mfma'):
            d = self._dist(lambda h: h[0].startswith('v_') and not h[0].startswith('v_mfma') and set(h[1]) & srcset)
            if d is not None and d < 2: need = max(need, 2-d)
        if isv:
            d = self._dist(lambda h: h[0] in ('buffer_store_dwordx4','buffer_store_dwordx3','global_store_dwordx4','global_store_dwordx3') and set(h[2]) & set(dst))
            if d is not None and d < 2: need = max(need, 2-d)
        if not op.startswith('v_mfma') and not op.startswith('s_'):
            def mf(h): return h[0].startswith('v_mfma') and (set(h[1]) & (set(src)|set(dst)))
            for h in reversed(self.hist[-24:]):
                if mf(h):
                    req = 12 if '32x32' in h[0] else 8
                    if 'f32_16x16x4_f32' in h[0]: req = 10
                    if 'f32_32x32x2_f32' in h[0]: req = 18
                    d = self._dist(lambda x: x is h)
                    if d < req: need = max(need, req-d)
                    break
        if need: self.nop(need)
        self.lines.append('    ' + s)
        self.hist.append((op, dst, src, 1))
    def text(self):
        return '\n'.join(self.lines) + '\n'

def vp(r):
    return f'v[{r}:{r+1}]'
def sp(r):
    return f's[{r}:{r+1}]'

class K:
    def __init__(self, a):
        self.a = a
    def cadd(self, d, x, y): self.a(f'v_pk_add_f32 {vp(d)}, {vp(x)}, {vp(y)}')
    def csub(self, d, x, y): self.a(f'v_pk_add_f32 {vp(d)}, {vp(x)}, {vp(y)} neg_lo:[0,1] neg_hi:[0,1]')
    def csub_mi(self, d, x, y):
        self.a(f'v_pk_add_f32 {vp(d)}, {vp(x)}, {vp(y)} op_sel:[1,1] op_sel_hi:[0,0] neg_lo:[0,1] neg_hi:[1,0]')
    def csub_pi(self, d, x, y):
        self.a(f'v_pk_add_f32 {vp(d)}, {vp(x)}, {vp(y)} op_sel:[1,1] op_sel_hi:[0,0] neg_lo:[1,0] neg_hi:[0,1]')
    def cmul(self, d, x, w, t, conj=False, wsg=False):
        W = sp(w) if wsg else vp(w)
        nh = '1' if conj else '0'
        self.a(f'v_pk_mul_f32 {vp(t)}, {vp(x)}, {W} op_sel:[0,0] op_sel_hi:[0,1] neg_hi:[0,{nh}]')
        nl = '0' if conj else '1'
        self.a(f'v_pk_fma_f32 {vp(d)}, {vp(x)}, {W}, {vp(t)} op_sel:[1,1,0] op_sel_hi:[1,0,1] neg_lo:[0,{nl},0]')
    def cmul_const(self, d, x, P, a, b, s1, s2, t):
        n1 = '1' if s1 < 0 else '0'; n2 = '1' if s2 < 0 else '0'; n2i = '0' if s2 < 0 else '1'
        self.a(f'v_pk_mul_f32 {vp(t)}, {vp(x)}, {sp(P)} op_sel:[0,{a}] op_sel_hi:[0,{b}] neg_lo:[0,{n1}] neg_hi:[0,{n2}]')
        self.a(f'v_pk_fma_f32 {vp(d)}, {vp(x)}, {sp(P)}, {vp(t)} op_sel:[1,{b},0] op_sel_hi:[1,{a},1] neg_lo:[0,{n2i},0] neg_hi:[0,{n1},0]')
    def tw_const(self, d, x, R, i, inv, t, S_C8, S_C16):
        ang = -2*math.pi*i/R * (-1 if inv else 1)
        wr, wi = math.cos(ang), math.sin(ang)
        c8 = math.sqrt(.5); c16 = math.cos(math.pi/8); s16 = math.sin(math.pi/8)
        def close(u, v): return abs(abs(u)-v) < 1e-9
        if close(wr, c8) and close(wi, c8):
            self.cmul_const(d, x, S_C8, 0, 1, 1 if wr > 0 else -1, 1 if wi > 0 else -1, t)
        elif close(wr, c16) and close(wi, s16):
            self.cmul_const(d, x, S_C16, 0, 1, 1 if wr > 0 else -1, 1 if wi > 0 else -1, t)
        elif close(wr, s16) and close(wi, c16):
            self.cmul_const(d, x, S_C16, 1, 0, 1 if wr > 0 else -1, 1 if wi > 0 else -1, t)
        else:
            raise ValueError((R, i))
    def fft_regs(self, x, inv, tmp, S_C8, S_C16):
        R = len(x)
        if R == 1: return list(x)
        h = R // 2
        lo, hi = [], []
        for i in range(h):
            a_, b_ = x[i], x[i+h]
            t = tmp[0]
            self.cadd(t, a_, b_)
            if i == 0:
                self.csub(b_, a_, b_)
            elif 4*i == R:
                (self.csub_pi if inv else self.csub_mi)(b_, a_, b_)
            else:
                self.csub(b_, a_, b_)
                self.tw_const(b_, b_, R, i, inv, tmp[1], S_C8, S_C16)
            tmp[0] = a_
            lo.append(t); hi.append(b_)
        e = self.fft_regs(lo, inv, tmp, S_C8, S_C16)
        o = self.fft_regs(hi, inv, tmp, S_C8, S_C16)
        out = [None]*R
        for k in range(h):
            out[2*k] = e[k]; out[2*k+1] = o[k]
        return out

def kernel_header(name):
    return f""".globl {name}
.p2align 8
.type {name},@function
{name}:
"""
def kernel_desc(name, vgpr, sgpr=96, accum=None):
    if accum is None: accum = (vgpr + 3)//4*4
    return f""".amdhsa_kernel {name}
  .amdhsa_next_free_vgpr {vgpr}
  .amdhsa_next_free_sgpr {sgpr}
  .amdhsa_accum_offset {accum}
  .amdhsa_group_segment_fixed_size 0
  .amdhsa_kernarg_size 120
  .amdhsa_user_sgpr_count 2
  .amdhsa_user_sgpr_kernarg_segment_ptr 1
  .amdhsa_system_sgpr_workgroup_id_x 1
.end_amdhsa_kernel
"""
```

```python
from asmlib import *
from kB import srd, build
import math

WS_R = 0x1800000
SZ_R = 1024*2048*2
LOG2E = 1.4426950408889634

def bf16_to_f32(a, d, s):
    a(f'v_lshlrev_b32 v{d}, 16, v{s}')

def stamp(a, diag, i):
    if diag:
        a(f's_memtime s[{64+2*i}:{65+2*i}]')
        a('s_waitcnt lgkmcnt(0)')
def stamp_dump(a, n, name):
    a('s_cmp_ge_u32 s2, 4')
    a(f's_cbranch_scc1 {name}_end')
    a('s_load_dwordx2 s[90:91], s[0:1], 104')
    a('s_waitcnt lgkmcnt(0)')
    srd(a, 92, 90, 256)
    a('v_cmp_eq_u32 vcc, 0, v0')
    a('s_and_saveexec_b64 s[88:89], vcc')
    a(f's_cbranch_execz {name}_end')
    a('s_lshl_b32 s88, s2, 5')
    a('v_mov_b32 v1, s88')
    for i in range(1, n):
        a(f's_sub_u32 s89, s{64+2*i}, s64')
        a(f'v_mov_b32 v2, s89')
        a(f'buffer_store_dword v2, v1, s[92:95], 0 offen offset:{4*i}')

def gen_kgen(name='kA_kgen_kernel'):
    a = Asm()
    a.raw(kernel_header(name))
    a('s_cmp_ge_u32 s2, 1024')
    a(f's_cbranch_scc1 {name}_end')
    a('s_load_dwordx4 s[16:19], s[0:1], 8')
    a('s_load_dwordx4 s[20:23], s[0:1], 24')
    a('s_load_dwordx4 s[24:27], s[0:1], 40')
    a('s_load_dwordx2 s[28:29], s[0:1], 56')
    a('s_load_dwordx2 s[30:31], s[0:1], 112')
    a('s_waitcnt lgkmcnt(0)')
    for i, b in enumerate((16, 18, 20, 22, 24, 26)):
        srd(a, 32 + 4*i, b, 1024*128*2)
    srd(a, 56, 28, 2048)
    srd(a, 60, 30, 1024*4160, WS_R)
    a('v_cmp_gt_u32 vcc, 128, v0')
    a('s_and_saveexec_b64 s[4:5], vcc')
    a(f's_cbranch_execz {name}_p1')
    a('s_lshl_b32 s6, s2, 8')
    a('v_lshlrev_b32 v1, 1, v0')
    for i in range(6):
        a(f'buffer_load_ushort v{2+i}, v1, s[{32+4*i}:{35+4*i}], s6 offen')
    a('s_lshl_b32 s7, s2, 1')
    a('v_mov_b32 v9, 0')
    a('buffer_load_ushort v8, v9, s[56:59], s7 offen')
    a('s_waitcnt vmcnt(0)')
    for i in range(7):
        a(f'v_lshlrev_b32 v{2+i}, 16, v{2+i}')
    a(f'v_mul_f32 v8, {f2u(LOG2E):#x}, v8')
    a('v_exp_f32 v8, v8')
    a('v_cvt_pk_bf16_f32 v8, v8, v8')
    a('v_lshlrev_b32 v8, 16, v8')
    a('v_mul_f32 v2, v8, v2')
    a(f'v_mul_f32 v12, {f2u(LOG2E):#x}, v2')
    a('v_mul_f32 v3, v8, v3')
    a(f'v_mul_f32 v13, {f2u(1/(2*math.pi)):#x}, v3')
    a('v_mul_f32 v4, v8, v4')
    a('v_mul_f32 v5, v8, v5')
    a('v_mul_f32 v14, v6, v4')
    a('v_fma_f32 v14, -v7, v5, v14')
    a('v_mul_f32 v15, v6, v5')
    a('v_fma_f32 v15, v7, v4, v15')
    a('v_lshlrev_b32 v1, 4, v0')
    a('ds_write_b128 v1, v[12:15]')
    a.label(f'{name}_p1')
    a('s_mov_b64 exec, s[4:5]')
    a('s_waitcnt lgkmcnt(0)')
    a('s_barrier')
    L = [20, 21, 22]; ACC = [24, 25, 26]
    a(f'v_cvt_f32_u32 v{L[0]}, v0')
    a('v_add_u32 v1, 128, v0')
    a('v_lshlrev_b32 v1, 1, v1')
    a('v_lshlrev_b32 v2, 2, v0')
    a('v_cmp_gt_u32 vcc, 128, v0')
    a('v_cndmask_b32 v1, v2, v1, vcc')
    a(f'v_cvt_f32_u32 v{L[1]}, v1')
    a('v_add_u32 v1, 128, v0')
    a('v_lshlrev_b32 v1, 3, v1')
    a(f'v_cvt_f32_u32 v{L[2]}, v1')
    for r in ACC: a(f'v_mov_b32 v{r}, 0')
    a('v_mov_b32 v30, 0')
    a('s_mov_b32 s6, 0')
    a.label(f'{name}_loop')
    UN = 4
    for u in range(UN):
        a(f'ds_read_b128 v[{32+4*u}:{35+4*u}], v30 offset:{16*u}')
    a('s_waitcnt lgkmcnt(0)')
    for u in range(UN):
        P = 32 + 4*u
        for i in range(3):
            t = 48 + 4*i
            a(f'v_mul_f32 v{t}, v{P}, v{L[i]}')
            a(f'v_mul_f32 v{t+1}, v{P+1}, v{L[i]}')
            a(f'v_fract_f32 v{t+1}, v{t+1}')
        for i in range(3):
            t = 48 + 4*i
            a(f'v_exp_f32 v{t}, v{t}')
            a(f'v_cos_f32 v{t+2}, v{t+1}')
            a(f'v_sin_f32 v{t+3}, v{t+1}')
        for i in range(3):
            t = 48 + 4*i
            a(f'v_mul_f32 v{t+2}, v{P+2}, v{t+2}')
            a(f'v_fma_f32 v{t+2}, -v{P+3}, v{t+3}, v{t+2}')
            a(f'v_fmac_f32 v{ACC[i]}, v{t}, v{t+2}')
    a(f'v_add_u32 v30, {16*UN}, v30')
    a(f's_add_u32 s6, s6, {UN}')
    a('s_cmp_lt_u32 s6, 128')
    a(f's_cbranch_scc1 {name}_loop')
    a('v_lshlrev_b32 v1, 2, v0')
    for i in range(3):
        a(f'ds_write_b32 v1, v{ACC[i]} offset:{4096 + 1024*i}')
    a('s_waitcnt lgkmcnt(0)')
    a('s_barrier')
    a('v_lshlrev_b32 v1, 3, v0')
    a('v_sub_u32 v1, 2047, v1')
    for j in range(8):
        r = 2 + j
        a(f'v_subrev_u32 v{r}, {j}, v1')
        a(f'v_cvt_f32_u32 v{r}, v{r}')
        a(f'v_cvt_pk_bf16_f32 v{r}, v{r}, v{r}')
        a(f'v_lshlrev_b32 v{r}, 16, v{r}')
        a(f'v_cvt_u32_f32 v{r}, v{r}')
        a(f'v_lshrrev_b32 v12, 1, v{r}')
        a(f'v_add_u32 v12, 128, v12')
        a(f'v_lshrrev_b32 v13, 2, v{r}')
        a(f'v_add_u32 v13, 256, v13')
        a(f'v_lshrrev_b32 v14, 3, v{r}')
        a(f'v_add_u32 v14, 384, v14')
        a(f'v_cmp_lt_u32 vcc, 255, v{r}')
        a(f'v_cndmask_b32 v15, v{r}, v12, vcc')
        a(f'v_cmp_lt_u32 vcc, 511, v{r}')
        a(f'v_cndmask_b32 v15, v15, v13, vcc')
        a(f'v_cmp_lt_u32 vcc, 1023, v{r}')
        a(f'v_cndmask_b32 v15, v15, v14, vcc')
        a(f'v_lshlrev_b32 v15, 2, v15')
        a(f'ds_read_b32 v{r}, v15 offset:4096')
    a('s_waitcnt lgkmcnt(0)')
    for j in range(4):
        a(f'v_cvt_pk_bf16_f32 v{16+j}, v{2+2*j}, v{3+2*j}')
    a('v_lshlrev_b32 v1, 4, v0')
    a('s_mul_i32 s6, s2, 4160')
    a('buffer_store_dwordx4 v[16:19], v1, s[60:63], s6 offen')
    a('v_cmp_gt_u32 vcc, 4, v0')
    a('s_and_saveexec_b64 s[4:5], vcc')
    a(f's_cbranch_execz {name}_end')
    for j in range(4): a(f'v_mov_b32 v{20+j}, 0')
    a('s_add_u32 s6, s6, 4096')
    a('buffer_store_dwordx4 v[20:23], v1, s[60:63], s6 offen')
    a.label(f'{name}_end')
    a('s_endpgm')
    return a.text(), kernel_desc(name, 64), f'; @launch kernel={name} grid=(1024,1,1) block=(256,1,1) lds={4096+3072}'

RB_ = 4160
UB_ = 4640
L_R = 0
L_U = 4*RB_
L_Y = L_U + 4*UB_
L_TOT = L_Y + 16384

def gen_conv(name='kA_conv_kernel', diag=False):
    a = Asm()
    a.raw(kernel_header(name))
    a('s_cmp_ge_u32 s2, 256')
    a(f's_cbranch_scc1 {name}_end')
    a('s_load_dwordx2 s[16:17], s[0:1], 0')
    a('s_load_dwordx2 s[18:19], s[0:1], 64')
    a('s_load_dwordx2 s[20:21], s[0:1], 96')
    a('s_load_dwordx2 s[22:23], s[0:1], 112')
    a('s_and_b32 s3, s2, 7')
    a('s_lshl_b32 s3, s3, 5')
    a('s_lshr_b32 s24, s2, 3')
    a('s_add_u32 s3, s3, s24')
    a('s_lshl_b32 s24, s3, 3')
    a('s_waitcnt lgkmcnt(0)')
    a('s_add_u32 s18, s18, s24')
    a('s_addc_u32 s19, s19, 0')
    a('s_load_dwordx2 s[26:27], s[18:19], 0')
    srd(a, 4, 16, 2048*1024*2)
    srd(a, 8, 20, 2048*2048*2)
    srd(a, 12, 22, SZ_R, WS_R)
    stamp(a, diag, 0)
    lane, wv = 1, 2
    a(f'v_and_b32 v{lane}, 63, v0')
    a(f'v_lshrrev_b32 v{wv}, 6, v0')
    U = 96
    a('v_lshlrev_b32 v3, 11, v0')
    for i in range(8):
        a(f's_add_u32 s25, s24, {i*256*2048}')
        a(f'buffer_load_dwordx2 v[{U+2*i}:{U+2*i+1}], v3, s[4:7], s25 offen')
    a('s_lshl_b32 s25, s3, 14')
    a(f'v_lshlrev_b32 v4, 12, v{wv}')
    a(f'v_lshl_add_u32 v4, v{lane}, 4, v4')
    for i in range(4):
        a(f'buffer_load_dwordx4 v[{8+4*i}:{11+4*i}], v4, s[12:15], s25 offen offset:{1024*i}')
    a('v_mov_b32 v24, 0'); a('v_mov_b32 v25, 0')
    a(f'v_mul_u32_u24 v5, {RB_}, v{wv}')
    a(f'v_mul_u32_u24 v6, {UB_}, v{wv}')
    a(f'v_lshl_add_u32 v7, v{lane}, 3, v6')
    a(f'ds_write_b64 v7, v[24:25] offset:{L_U}')
    a(f'v_cmp_gt_u32 vcc, 8, v{lane}')
    a('s_and_saveexec_b64 s[28:29], vcc')
    a(f'ds_write_b64 v7, v[24:25] offset:{L_U + 512}')
    a('s_mov_b64 exec, s[28:29]')
    a(f'v_lshl_add_u32 v7, v{lane}, 3, v5')
    a('s_and_saveexec_b64 s[28:29], vcc')
    a(f'ds_write_b64 v7, v[24:25] offset:{L_R + 4096}')
    a('s_mov_b64 exec, s[28:29]')
    a('s_waitcnt lgkmcnt(0)')
    a('s_barrier')
    a('s_waitcnt vmcnt(0)')
    stamp(a, diag, 1)
    a(f'v_lshl_add_u32 v7, v{lane}, 4, v5')
    for i in range(4):
        a(f'ds_write_b128 v7, v[{8+4*i}:{11+4*i}] offset:{L_R + 1024*i}')
    a('v_lshlrev_b32 v7, 1, v0')
    for i in range(8):
        for ch in range(4):
            r = U + 2*i + (ch >> 1)
            op = 'ds_write_b16_d16_hi' if ch & 1 else 'ds_write_b16'
            a(f'{op} v7, v{r} offset:{L_U + ch*UB_ + 544 + i*512}')
    a('s_waitcnt lgkmcnt(0)')
    a('s_barrier')
    stamp(a, diag, 2)
    vA, vB = 3, 4
    a(f'v_and_b32 v8, 15, v{lane}')
    a(f'v_lshrrev_b32 v9, 5, v{lane}')
    a(f'v_bfe_u32 v10, v{lane}, 4, 1')
    a('v_lshlrev_b32 v11, 4, v9')
    a('v_add_u32 v11, v11, v8')
    a('v_lshlrev_b32 v12, 3, v10')
    a('v_sub_u32 v11, v12, v11')
    a(f'v_add_u32 v11, {2047 - 32*63}, v11')
    a(f'v_lshl_add_u32 v{vA}, v11, 1, v5')
    a('v_lshlrev_b32 v11, 4, v8')
    a('v_lshlrev_b32 v13, 4, v9')
    a('v_sub_u32 v11, v11, v13')
    a('v_add_u32 v11, v11, v12')
    a('v_add_u32 v11, 16, v11')
    a(f'v_lshl_add_u32 v{vB}, v11, 1, v6')
    ACC = [112 + 4*b for b in range(8)]
    for b in range(8):
        for r in range(4): a(f'v_mov_b32 v{ACC[b]+r}, 0')
    Areg = [8, 12]
    Breg = [[16 + 4*b for b in range(8)], [48 + 4*b for b in range(8)]]
    def blocks(c): return [b for b in range(8) if 16*b + 15 - 2*c >= 0]
    def issue(c):
        s = c & 1
        a(f'ds_read_b128 v[{Areg[s]}:{Areg[s]+3}], v{vA} offset:{L_R + (63-c)*64}')
        for b in blocks(c):
            a(f'ds_read_b128 v[{Breg[s][b]}:{Breg[s][b]+3}], v{vB} offset:{L_U + 2*(256 + 256*b - 32*c)}')
    issue(0)
    for c in range(64):
        s = c & 1
        if c < 63:
            issue(c+1)
            a(f's_waitcnt lgkmcnt({1 + len(blocks(c+1))})')
        else:
            a('s_waitcnt lgkmcnt(0)')
        for b in blocks(c):
            a(f'v_mfma_f32_16x16x32_bf16 v[{ACC[b]}:{ACC[b]+3}], v[{Areg[s]}:{Areg[s]+3}], v[{Breg[s][b]}:{Breg[s][b]+3}], v[{ACC[b]}:{ACC[b]+3}]')
    stamp(a, diag, 3)
    a(f'v_lshrrev_b32 v9, 4, v{lane}')
    a(f'v_and_b32 v8, 15, v{lane}')
    a('v_lshlrev_b32 v8, 4, v8')
    a('v_lshl_add_u32 v8, v9, 2, v8')
    a(f'v_lshl_add_u32 v8, v8, 2, v{wv}')
    a('v_lshlrev_b32 v8, 1, v8')
    for b in range(8):
        for r in range(0, 4, 2):
            a(f'v_cvt_pk_bf16_f32 v10, v{ACC[b]+r}, v{ACC[b]+r+1}')
            a(f'ds_write_b16 v8, v10 offset:{L_Y + (256*b + r)*8}')
            a(f'ds_write_b16_d16_hi v8, v10 offset:{L_Y + (256*b + r + 1)*8}')
    a('s_waitcnt lgkmcnt(0)')
    a('s_barrier')
    stamp(a, diag, 4)
    a('v_lshlrev_b32 v3, 3, v0')
    for i in range(8):
        a(f'ds_read_b64 v[{16+2*i}:{17+2*i}], v3 offset:{L_Y + i*2048}')
    a('s_lshl_b32 s32, s26, 16'); a('s_and_b32 s33, s26, 0xffff0000')
    a('s_lshl_b32 s34, s27, 16'); a('s_and_b32 s35, s27, 0xffff0000')
    a('v_lshlrev_b32 v4, 12, v0')
    a('s_waitcnt lgkmcnt(0)')
    for i in range(8):
        for hf in range(2):
            u = U + 2*i + hf; y = 16 + 2*i + hf
            a(f'v_lshlrev_b32 v40, 16, v{u}')
            a(f'v_and_b32 v41, 0xffff0000, v{u}')
            a(f'v_mul_f32 v40, s{32+2*hf}, v40')
            a(f'v_mul_f32 v41, s{33+2*hf}, v41')
            a(f'v_cvt_pk_bf16_f32 v40, v40, v41')
            a(f'v_lshlrev_b32 v41, 16, v40')
            a(f'v_and_b32 v42, 0xffff0000, v40')
            a(f'v_lshlrev_b32 v43, 16, v{y}')
            a(f'v_and_b32 v44, 0xffff0000, v{y}')
            a(f'v_add_f32 v41, v41, v43')
            a(f'v_add_f32 v42, v42, v44')
            a(f'v_cvt_pk_bf16_f32 v{y}, v41, v42')
        a(f's_add_u32 s25, s24, {i*256*4096}')
        a(f'buffer_store_dwordx2 v[{16+2*i}:{17+2*i}], v4, s[8:11], s25 offen')
    if diag:
        a('s_waitcnt vmcnt(0)')
        stamp(a, diag, 5)
        stamp_dump(a, 6, name)
    a.label(f'{name}_end')
    a('s_endpgm')
    return a.text(), kernel_desc(name, 144, 100), f'; @launch kernel={name} grid=(256,1,1) block=(256,1,1) lds={L_TOT}'

if __name__ == '__main__':
    build([gen_kgen(), gen_conv()], 't_A.s')
```

```python
from asmlib import *
from kB import srd, build
from kA import WS_R, SZ_R, LOG2E, stamp, stamp_dump
import math

WS_UT = 0x1D00000
WS_YT = 0x2200000
SZ_T = 1024*2048*2

def gen_utr(name='kA_utr_kernel', fa=None):
    a = fa if fa is not None else Asm()
    if fa is None: a.raw(kernel_header(name))
    a('s_cmp_ge_u32 s2, 512')
    a(f's_cbranch_scc1 {name}_end')
    a('s_load_dwordx2 s[16:17], s[0:1], 0')
    a('s_load_dwordx2 s[18:19], s[0:1], 112')
    a('s_and_b32 s20, s2, 15')
    a('s_lshr_b32 s21, s2, 4')
    a('s_waitcnt lgkmcnt(0)')
    srd(a, 4, 16, 2048*1024*2)
    srd(a, 8, 18, SZ_T, WS_UT)
    a('v_lshrrev_b32 v1, 3, v0')
    a('v_and_b32 v2, 7, v0')
    a('v_lshlrev_b32 v3, 11, v1')
    a('v_lshl_add_u32 v3, v2, 4, v3')
    a('s_lshl_b32 s22, s21, 17')
    a('s_lshl_b32 s23, s20, 7')
    a('s_add_u32 s22, s22, s23')
    a('s_add_u32 s23, s22, 65536')
    a('buffer_load_dwordx4 v[8:11], v3, s[4:7], s22 offen')
    a('buffer_load_dwordx4 v[12:15], v3, s[4:7], s23 offen')
    a('v_mul_u32_u24 v4, 1056, v2')
    a('v_lshl_add_u32 v4, v1, 1, v4')
    a('s_waitcnt vmcnt(0)')
    for h in range(2):
        for j in range(8):
            op = 'ds_write_b16_d16_hi' if j & 1 else 'ds_write_b16'
            a(f'{op} v4, v{8+4*h+(j>>1)} offset:{j*132 + 64*h}')
    a('s_waitcnt lgkmcnt(0)')
    a('s_barrier')
    a('v_lshrrev_b32 v1, 2, v0')
    a('v_and_b32 v2, 3, v0')
    a('v_mul_u32_u24 v4, 132, v1')
    a('v_lshl_add_u32 v4, v2, 5, v4')
    a('ds_read_b128 v[8:11], v4')
    a('ds_read_b128 v[12:15], v4 offset:16')
    a('v_lshlrev_b32 v3, 12, v1')
    a('v_lshl_add_u32 v3, v2, 5, v3')
    a('s_lshl_b32 s22, s20, 18')
    a('s_lshl_b32 s23, s21, 7')
    a('s_add_u32 s22, s22, s23')
    a('s_waitcnt lgkmcnt(0)')
    a('buffer_store_dwordx4 v[8:11], v3, s[8:11], s22 offen')
    a('buffer_store_dwordx4 v[12:15], v3, s[8:11], s22 offen offset:16')
    a.label(f'{name}_end')
    a('s_endpgm')
    return a.text(), kernel_desc(name, 16), f'; @launch kernel={name} grid=(512,1,1) block=(256,1,1) lds={64*132}'

def gen_aout(name='kA_out_kernel', fa=None):
    a = fa if fa is not None else Asm()
    if fa is None: a.raw(kernel_header(name))
    a('s_cmp_ge_u32 s2, 512')
    a(f's_cbranch_scc1 {name}_end')
    a('s_load_dwordx2 s[16:17], s[0:1], 0')
    a('s_load_dwordx2 s[18:19], s[0:1], 112')
    a('s_load_dwordx2 s[24:25], s[0:1], 64')
    a('s_load_dwordx2 s[26:27], s[0:1], 96')
    a('s_and_b32 s20, s2, 15')
    a('s_lshr_b32 s21, s2, 4')
    a('s_waitcnt lgkmcnt(0)')
    srd(a, 4, 16, 2048*1024*2)
    srd(a, 8, 18, SZ_T, WS_YT)
    srd(a, 12, 24, 2048)
    srd(a, 28, 26, 2048*2048*2)
    a('v_lshrrev_b32 v1, 2, v0')
    a('v_and_b32 v2, 3, v0')
    a('v_lshlrev_b32 v3, 12, v1')
    a('v_lshl_add_u32 v3, v2, 5, v3')
    a('s_lshl_b32 s22, s20, 18')
    a('s_lshl_b32 s23, s21, 7')
    a('s_add_u32 s22, s22, s23')
    a('buffer_load_dwordx4 v[8:11], v3, s[8:11], s22 offen')
    a('buffer_load_dwordx4 v[12:15], v3, s[8:11], s22 offen offset:16')
    a('v_mul_u32_u24 v4, 132, v1')
    a('v_lshl_add_u32 v4, v2, 5, v4')
    a('v_lshrrev_b32 v5, 3, v0')
    a('v_and_b32 v6, 7, v0')
    a('v_lshlrev_b32 v7, 11, v5')
    a('v_lshl_add_u32 v7, v6, 4, v7')
    a('s_lshl_b32 s22, s21, 17')
    a('s_lshl_b32 s23, s20, 7')
    a('s_add_u32 s22, s22, s23')
    a('s_add_u32 s32, s22, 65536')
    a('buffer_load_dwordx4 v[16:19], v7, s[4:7], s22 offen')
    a('buffer_load_dwordx4 v[20:23], v7, s[4:7], s32 offen')
    a('v_lshlrev_b32 v28, 4, v6')
    a('buffer_load_dwordx4 v[24:27], v28, s[12:15], s23 offen')
    a('s_waitcnt vmcnt(3)')
    a('ds_write_b128 v4, v[8:11]')
    a('ds_write_b128 v4, v[12:15] offset:16')
    a('s_waitcnt lgkmcnt(0)')
    a('s_barrier')
    a('v_mul_u32_u24 v4, 1056, v6')
    a('v_lshl_add_u32 v4, v5, 1, v4')
    for h in range(2):
        for j in range(8):
            a(f'ds_read_u16 v{32+8*h+j}, v4 offset:{j*132 + 64*h}')
    a('v_lshlrev_b32 v7, 12, v5')
    a('v_lshl_add_u32 v7, v6, 4, v7')
    a('s_lshl_b32 s22, s21, 18')
    a('s_add_u32 s22, s22, s23')
    a('s_add_u32 s32, s22, 131072')
    a('s_waitcnt vmcnt(0) lgkmcnt(0)')
    for h in range(2):
        for jj in range(4):
            u = 16 + 4*h + jj; dk = 24 + jj
            a(f'v_lshlrev_b32 v48, 16, v{u}')
            a(f'v_and_b32 v49, 0xffff0000, v{u}')
            a(f'v_lshlrev_b32 v50, 16, v{dk}')
            a(f'v_and_b32 v51, 0xffff0000, v{dk}')
            a(f'v_mul_f32 v48, v48, v50')
            a(f'v_mul_f32 v49, v49, v51')
            a(f'v_cvt_pk_bf16_f32 v48, v48, v49')
            a(f'v_lshlrev_b32 v49, 16, v48')
            a(f'v_and_b32 v50, 0xffff0000, v48')
            a(f'v_lshlrev_b32 v51, 16, v{32+8*h+2*jj}')
            a(f'v_lshlrev_b32 v52, 16, v{33+8*h+2*jj}')
            a(f'v_add_f32 v49, v49, v51')
            a(f'v_add_f32 v50, v50, v52')
            a(f'v_cvt_pk_bf16_f32 v{56+4*h+jj}, v49, v50')
        a(f'buffer_store_dwordx4 v[{56+4*h}:{59+4*h}], v7, s[28:31], s{22 if h == 0 else 32} offen')
    a.label(f'{name}_end')
    a('s_endpgm')
    return a.text(), kernel_desc(name, 64), f'; @launch kernel={name} grid=(512,1,1) block=(256,1,1) lds={64*132}'

RSTR = 4160
UB_ = 4640
CH_ = 2*4160 + UB_

def gen_conv2(name='kA_conv_kernel', waves=4, diag=False, fa=None):
    a = fa if fa is not None else Asm()
    if fa is None: a.raw(kernel_header(name))
    nwg = 1024 // waves
    a(f's_cmp_ge_u32 s2, {nwg}')
    a(f's_cbranch_scc1 {name}_end')
    a('s_load_dwordx2 s[22:23], s[0:1], 112')
    stamp(a, diag, 0)
    lane, wv = 1, 2
    a(f'v_and_b32 v{lane}, 63, v0')
    a(f'v_lshrrev_b32 v{wv}, 6, v0')
    a('s_waitcnt lgkmcnt(0)')
    srd(a, 4, 22, SZ_T, WS_UT)
    srd(a, 8, 22, SZ_T, WS_YT)
    srd(a, 12, 22, 1024*RSTR, WS_R)
    a(f's_mul_i32 s24, s2, {waves*4096}')
    a(f's_mul_i32 s25, s2, {waves*RSTR}')
    a('s_add_u32 s26, s25, 4096')
    a(f'v_lshlrev_b32 v4, 12, v{wv}')
    a(f'v_lshl_add_u32 v4, v{lane}, 4, v4')
    UR = 16
    for i in range(4):
        a(f'buffer_load_dwordx4 v[{UR+4*i}:{UR+3+4*i}], v4, s[4:7], s24 offen offset:{1024*i}')
    a(f'v_mul_u32_u24 v4, {RSTR}, v{wv}')
    a(f'v_lshl_add_u32 v4, v{lane}, 4, v4')
    XR = 32
    for i in range(5):
        if i == 4:
            a(f'v_cmp_gt_u32 vcc, 4, v{lane}')
            a('s_and_saveexec_b64 s[28:29], vcc')
        for sh in range(2):
            r = XR + 8*i + 4*sh
            if i < 4:
                a(f'buffer_load_dwordx4 v[{r}:{r+3}], v4, s[12:15], s25 offen offset:{1024*i + 4*sh}')
            else:
                a(f'buffer_load_dwordx4 v[{r}:{r+3}], v4, s[12:15], s26 offen offset:{4*sh}')
    a('s_mov_b64 exec, s[28:29]')
    a('v_mov_b32 v8, 0'); a('v_mov_b32 v9, 0')
    a(f'v_mul_u32_u24 v5, {CH_}, v{wv}')
    a(f'v_lshl_add_u32 v7, v{lane}, 3, v5')
    a(f'ds_write_b64 v7, v[8:9] offset:{2*4160}')
    a('s_and_saveexec_b64 s[28:29], vcc')
    a(f'ds_write_b64 v7, v[8:9] offset:{2*4160 + 512}')
    a('s_mov_b64 exec, s[28:29]')
    a(f'v_lshl_add_u32 v7, v{lane}, 4, v5')
    a('s_waitcnt vmcnt(10)')
    for i in range(4):
        a(f'ds_write_b128 v7, v[{UR+4*i}:{UR+3+4*i}] offset:{2*4160 + 544 + 1024*i}')
    for i in range(5):
        a(f's_waitcnt vmcnt({8 - 2*i})')
        if i == 4:
            a('s_and_saveexec_b64 s[28:29], vcc')
        X0, X2 = XR + 8*i, XR + 8*i + 4
        for j in range(4):
            a(f'v_alignbyte_b32 v{X2+j}, v{X2+j}, v{X0+j}, 2')
        a(f'ds_write_b128 v7, v[{X0}:{X0+3}] offset:{1024*i}')
        a(f'ds_write_b128 v7, v[{X2}:{X2+3}] offset:{4160 + 1024*i}')
    a('s_mov_b64 exec, s[28:29]')
    vA, vB = 176, 6
    a(f'v_and_b32 v8, 15, v{lane}')
    a(f'v_lshrrev_b32 v9, 5, v{lane}')
    a(f'v_bfe_u32 v10, v{lane}, 4, 1')
    a('v_lshlrev_b32 v11, 4, v9')
    a('v_add_u32 v11, v11, v8')
    a('v_lshlrev_b32 v12, 3, v10')
    a('v_sub_u32 v11, v12, v11')
    a(f'v_add_u32 v11, {2047 - 32*63}, v11')
    a('v_and_b32 v13, 1, v11')
    a('v_sub_u32 v11, v11, v13')
    a('v_mul_u32_u24 v13, 4160, v13')
    a('v_lshl_add_u32 v11, v11, 1, v13')
    a(f'v_add_u32 v{vA}, v11, v5')
    for q in range(1, 4): a(f'v_add_u32 v{vA+q}, {1024*q}, v{vA}')
    a('v_lshlrev_b32 v11, 4, v8')
    a('v_lshlrev_b32 v13, 4, v9')
    a('v_sub_u32 v11, v11, v13')
    a('v_add_u32 v11, v11, v12')
    a('v_add_u32 v11, 16, v11')
    a(f'v_lshl_add_u32 v{vB}, v11, 1, v5')
    a('s_waitcnt lgkmcnt(0)')
    stamp(a, diag, 1)
    ACC = [16 + 4*b for b in range(8)]
    Bs = [[48 + 4*i for i in range(8)], [80 + 4*i for i in range(8)]]
    As = [[112 + 4*i for i in range(8)], [144 + 4*i for i in range(8)]]
    for b in range(8):
        for r in range(4): a(f'v_mov_b32 v{ACC[b]+r}, 0')
    def ldB(c0):
        s = c0 & 1
        for i in range(8):
            a(f'ds_read_b128 v[{Bs[s][i]}:{Bs[s][i]+3}], v{vB} offset:{2*4160 + 2*(256 + 256*i - 32*c0)}')
    def ldA(c0):
        s = c0 & 1
        for j in range(8):
            c = c0 + 8*j
            o = (63 - c)*16
            base = vA + o // 256; o = o % 256
            a(f'ds_read2_b32 v[{As[s][j]}:{As[s][j]+1}], v{base} offset0:{o} offset1:{o+1}')
            a(f'ds_read2_b32 v[{As[s][j]+2}:{As[s][j]+3}], v{base} offset0:{o+2} offset1:{o+3}')
            if j == 3: a('s_waitcnt lgkmcnt(7)')
    ldB(0); a('s_waitcnt lgkmcnt(7)'); ldA(0)
    a('s_waitcnt lgkmcnt(0)')
    for c0 in range(8):
        s = c0 & 1
        ml = [(j, b) for j in range(8) for b in range(j, 8)]
        if c0 < 7: ldB(c0+1)
        for idx, (j, b) in enumerate(ml):
            if idx == 12 and c0 < 7:
                a('s_waitcnt lgkmcnt(7)')
                ldA(c0+1)
            a(f'v_mfma_f32_16x16x32_bf16 v[{ACC[b]}:{ACC[b]+3}], v[{As[s][j]}:{As[s][j]+3}], v[{Bs[s][b-j]}:{Bs[s][b-j]+3}], v[{ACC[b]}:{ACC[b]+3}]')
        a('s_waitcnt lgkmcnt(0)')
    stamp(a, diag, 2)
    a(f'v_lshrrev_b32 v9, 4, v{lane}')
    a(f'v_and_b32 v8, 15, v{lane}')
    a('v_lshlrev_b32 v8, 5, v8')
    a('v_lshl_add_u32 v8, v9, 3, v8')
    a(f'v_lshl_add_u32 v8, v{wv}, 12, v8')
    for b in range(8):
        a(f'v_cvt_pk_bf16_f32 v{48+2*b}, v{ACC[b]}, v{ACC[b]+1}')
        a(f'v_cvt_pk_bf16_f32 v{49+2*b}, v{ACC[b]+2}, v{ACC[b]+3}')
        a(f'buffer_store_dwordx2 v[{48+2*b}:{49+2*b}], v8, s[8:11], s24 offen offset:{512*b}')
    if diag:
        a('s_waitcnt vmcnt(0)')
        stamp(a, diag, 3)
        stamp_dump(a, 4, name)
    a.label(f'{name}_end')
    a('s_endpgm')
    return a.text(), kernel_desc(name, 180, 100), f'; @launch kernel={name} grid=({nwg},1,1) block=({64*waves},1,1) lds={waves*CH_}'

if __name__ == '__main__':
    from kA import gen_kgen
    build([gen_kgen(), gen_utr(), gen_conv2(diag=True), gen_aout()], 't_A.s')
```

```python
from asmlib import *
from kB import srd, build
from kA import WS_R, LOG2E, stamp, stamp_dump
import math

TS = 528
LA = 0; LB = 32*TS; LKD = 64*TS
L_KGEN = LKD + 4*656

def body_kgen(a, name, diag=False):
    k = K(a)
    a('s_load_dwordx4 s[16:19], s[0:1], 8')
    a('s_load_dwordx4 s[20:23], s[0:1], 24')
    a('s_load_dwordx4 s[24:27], s[0:1], 40')
    a('s_load_dwordx2 s[28:29], s[0:1], 56')
    a('s_load_dwordx2 s[30:31], s[0:1], 112')
    a('v_lshrrev_b32 v3, 6, v0')
    a('v_and_b32 v10, 127, v0')
    a('v_readfirstlane_b32 s9, v3')
    a('s_waitcnt lgkmcnt(0)')
    for i, b in enumerate((16, 18, 20, 22, 24, 26)):
        srd(a, 32 + 4*i, b, 1024*128*2)
    srd(a, 56, 28, 2048)
    srd(a, 60, 30, 1024*4160, WS_R)
    a('s_lshl_b32 s6, s2, 8')
    a('v_lshlrev_b32 v1, 1, v10')
    for i in range(6):
        a(f'buffer_load_ushort v{2+i}, v1, s[{32+4*i}:{35+4*i}], s6 offen')
    a('s_lshl_b32 s7, s2, 1')
    a('v_mov_b32 v9, 0')
    a('buffer_load_ushort v8, v9, s[56:59], s7 offen')
    a('s_waitcnt vmcnt(0)')
    for i in range(7):
        a(f'v_lshlrev_b32 v{2+i}, 16, v{2+i}')
    a(f'v_mul_f32 v8, {f2u(LOG2E):#x}, v8')
    a('v_exp_f32 v8, v8')
    a('v_cvt_pk_bf16_f32 v8, v8, v8')
    a('v_lshlrev_b32 v8, 16, v8')
    AL, BL, C = 12, 13, 14
    a('v_mul_f32 v2, v8, v2')
    a(f'v_mul_f32 v{AL}, {f2u(LOG2E):#x}, v2')
    a('v_mul_f32 v3, v8, v3')
    a(f'v_mul_f32 v{BL}, {f2u(1/(2*math.pi)):#x}, v3')
    a('v_mul_f32 v4, v8, v4')
    a('v_mul_f32 v5, v8, v5')
    a(f'v_mul_f32 v{C}, v6, v4')
    a(f'v_fma_f32 v{C}, -v7, v5, v{C}')
    a(f'v_mul_f32 v{C+1}, v6, v5')
    a(f'v_fma_f32 v{C+1}, v7, v4, v{C+1}')
    Z = {1 << p: 16 + 2*p for p in range(11)}
    def anchors(ps):
        for n_, p in enumerate(ps):
            m = float(1 << p); t = 40 + 4*(n_ & 3)
            a(f'v_mul_f32 v{t}, {f2u(m):#x}, v{AL}')
            a(f'v_mul_f32 v{t+1}, {f2u(m):#x}, v{BL}')
            a(f'v_fract_f32 v{t+1}, v{t+1}')
        for n_, p in enumerate(ps):
            t = 40 + 4*(n_ & 3)
            a(f'v_exp_f32 v{t}, v{t}')
            a(f'v_cos_f32 v{t+2}, v{t+1}')
            a(f'v_sin_f32 v{t+3}, v{t+1}')
        for n_, p in enumerate(ps):
            t = 40 + 4*(n_ & 3); z = Z[1 << p]
            a(f'v_mul_f32 v{z}, v{t}, v{t+2}')
            a(f'v_mul_f32 v{z+1}, v{t}, v{t+3}')
    vL = 1
    a(f'v_lshlrev_b32 v{vL}, 2, v10')
    T = [76, 78]; PK = [84, 85]; P = [60, 62]
    a('s_cmp_ge_u32 s9, 2')
    a(f's_cbranch_scc1 {name}_roleA')
    anchors([0, 1, 2, 3])
    a('v_mov_b32 v56, 0x3f80')
    lane = 2
    a(f'v_and_b32 v{lane}, 63, v0')
    a(f'v_and_b32 v4, 15, v{lane}')
    a(f'v_lshrrev_b32 v5, 4, v{lane}')
    a(f'v_mul_u32_u24 v6, {TS}, v4')
    a(f'v_lshl_add_u32 v6, v5, 4, v6')
    a(f's_mul_i32 s10, s9, {16*TS}')
    a(f'v_add_u32 v6, s10, v6')
    a('v_lshl_add_u32 v7, v5, 6, v4')
    a('v_lshlrev_b32 v7, 2, v7')
    for ph in range(2):
        for hs in range(2):
            s = 2*ph + hs
            a(f'ds_write_b32 v{vL}, v56 offset:{LB + 16*hs*TS}')
            a(f'v_mov_b32 v{P[hs]}, v{Z[1<<s]}'); a(f'v_mov_b32 v{P[hs]+1}, v{Z[1<<s]+1}')
        for step in range(15):
            for hs in range(2):
                s = 2*ph + hs; p = P[hs]
                a(f'v_cvt_pk_bf16_f32 v{PK[hs]}, v{p}, v{p+1}')
                a(f'ds_write_b32 v{vL}, v{PK[hs]} offset:{LB + (16*hs + step + 1)*TS}')
                if step < 14: k.cmul(p, p, Z[1 << s], T[hs])
        a('s_waitcnt lgkmcnt(0)')
        a('s_barrier')
        ACC = 8
        for r in range(4): a(f'v_mov_b32 v{ACC+r}, 0')
        for qb in range(2):
            for q4 in range(4):
                q = 4*qb + q4
                a(f'ds_read_b128 v[{88+8*q4}:{91+8*q4}], v6 offset:{LA + q*64}')
                a(f'ds_read_b128 v[{92+8*q4}:{95+8*q4}], v6 offset:{LB + q*64}')
            a('s_waitcnt lgkmcnt(0)')
            for q4 in range(4):
                a(f'v_mfma_f32_16x16x32_bf16 v[{ACC}:{ACC+3}], v[{88+8*q4}:{91+8*q4}], v[{92+8*q4}:{95+8*q4}], v[{ACC}:{ACC+3}]')
        lw1 = f'{name}_k{ph}w1'; lwd = f'{name}_k{ph}d'
        a('s_cmp_eq_u32 s9, 1')
        a(f's_cbranch_scc1 {lw1}')
        s = 2*ph
        if s == 0:
            for r in range(4):
                a(f'ds_write_b32 v7, v{ACC+r} offset:{LKD + 64*r}')
        else:
            a('v_cmp_gt_u32 vcc, 2, v5')
            a('s_and_saveexec_b64 s[4:5], vcc')
            for r in range(4):
                a(f'ds_write_b32 v7, v{ACC+r} offset:{LKD + 4*(128+128*s) + 64*r}')
            a('s_mov_b64 exec, s[4:5]')
        a(f's_branch {lwd}')
        a.label(lw1)
        a.nop(8)
        s = 2*ph + 1
        a('v_cmp_gt_u32 vcc, 2, v5')
        a('s_and_saveexec_b64 s[4:5], vcc')
        for r in range(4):
            a(f'ds_write_b32 v7, v{ACC+r} offset:{LKD + 4*(128+128*s) + 64*r}')
        a('s_mov_b64 exec, s[4:5]')
        if s == 3:
            a(f'v_cmp_eq_u32 vcc, 32, v{lane}')
            a('s_and_saveexec_b64 s[4:5], vcc')
            a(f'ds_write_b32 v7, v{ACC} offset:{LKD + 4*512}')
            a('s_mov_b64 exec, s[4:5]')
        a.label(lwd)
        a('s_waitcnt lgkmcnt(0)')
        a('s_barrier')
    a(f's_branch {name}_expand')
    a.label(f'{name}_roleA')
    anchors([4, 5, 6, 7]); anchors([8, 9, 10])
    nrowsA = {0: 16, 1: 8, 2: 8, 3: 9}
    for ph in range(2):
        for hs in range(2):
            s = 2*ph + hs
            if s == 0:
                a(f'v_mov_b32 v{P[hs]}, v{C}'); a(f'v_mov_b32 v{P[hs]+1}, v{C+1}')
            else:
                k.cmul(P[hs], C, Z[128 << s], T[hs])
        for step in range(16):
            for hs in range(2):
                s = 2*ph + hs; p = P[hs]
                if step < nrowsA[s]:
                    a(f'v_cvt_pk_bf16_f32 v{PK[hs]}, v{p}, -v{p+1}')
                    a(f'ds_write_b32 v{vL}, v{PK[hs]} offset:{LA + (16*hs + step)*TS}')
                    if step < nrowsA[s] - 1: k.cmul(p, p, Z[16 << s], T[hs])
        a('s_waitcnt lgkmcnt(0)')
        a('s_barrier')
        a('s_barrier')
    a.label(f'{name}_expand')
    a(f's_mov_b32 s8, {LKD}')
    a('v_lshlrev_b32 v1, 3, v0')
    a('v_sub_u32 v1, 2047, v1')
    for j in range(8):
        r = 16 + j
        a(f'v_subrev_u32 v{r}, {j}, v1')
        a(f'v_cvt_f32_u32 v{r}, v{r}')
        a(f'v_cvt_pk_bf16_f32 v{r}, v{r}, v{r}')
        a(f'v_lshlrev_b32 v{r}, 16, v{r}')
        a(f'v_cvt_u32_f32 v{r}, v{r}')
        a(f'v_lshrrev_b32 v12, 1, v{r}')
        a(f'v_add_u32 v12, 128, v12')
        a(f'v_lshrrev_b32 v13, 2, v{r}')
        a(f'v_add_u32 v13, 256, v13')
        a(f'v_lshrrev_b32 v14, 3, v{r}')
        a(f'v_add_u32 v14, 384, v14')
        a(f'v_cmp_lt_u32 vcc, 255, v{r}')
        a(f'v_cndmask_b32 v15, v{r}, v12, vcc')
        a(f'v_cmp_lt_u32 vcc, 511, v{r}')
        a(f'v_cndmask_b32 v15, v15, v13, vcc')
        a(f'v_cmp_lt_u32 vcc, 1023, v{r}')
        a(f'v_cndmask_b32 v15, v15, v14, vcc')
        a(f'v_lshl_add_u32 v15, v15, 2, s8')
        a(f'ds_read_b32 v{r}, v15')
    a('s_waitcnt lgkmcnt(0)')
    for j in range(4):
        a(f'v_cvt_pk_bf16_f32 v{32+j}, v{16+2*j}, v{17+2*j}')
    a('v_lshlrev_b32 v1, 4, v0')
    a('s_mul_i32 s6, s2, 4160')
    a('buffer_store_dwordx4 v[32:35], v1, s[60:63], s6 offen')
    a('v_cmp_gt_u32 vcc, 4, v0')
    a('s_and_saveexec_b64 s[4:5], vcc')
    a(f's_cbranch_execz {name}_kend')
    for j in range(4): a(f'v_mov_b32 v{40+j}, 0')
    a('s_add_u32 s6, s6, 4096')
    a('buffer_store_dwordx4 v[40:43], v1, s[60:63], s6 offen')
    a.label(f'{name}_kend')
    a('s_endpgm')

def gen_kgen3(name='kA_kgen_kernel'):
    a = Asm()
    a.raw(kernel_header(name))
    a('s_cmp_ge_u32 s2, 1024')
    a(f's_cbranch_scc1 {name}_end')
    body_kgen(a, name)
    a.label(f'{name}_end')
    a('s_endpgm')
    return a.text(), kernel_desc(name, 120, 100), f'; @launch kernel={name} grid=(1024,1,1) block=(256,1,1) lds={L_KGEN}'

if __name__ == '__main__':
    from kA2 import *
    build([gen_kgen3(), gen_utr(), gen_conv2(), gen_aout()], 't_A.s')
```

```python
from asmlib import *
import math

WS_X1T = 0x0000000
WS_Y1T = 0x0900000
WS_WP  = 0x1200000
SZ_XT = 513*2048*8
SZ_WP = 513*2048*4

def srd(a, d, base, size, off=0):
    if off:
        a(f's_add_u32 s{d}, s{base}, {off}')
        a(f's_addc_u32 s{d+1}, s{base+1}, 0')
        a(f's_and_b32 s{d+1}, s{d+1}, 0xffff')
    else:
        a(f's_mov_b32 s{d}, s{base}')
        a(f's_and_b32 s{d+1}, s{base+1}, 0xffff')
    a(f's_mov_b32 s{d+2}, {size}')
    a(f's_mov_b32 s{d+3}, 0x00020000')

def consts(a, S_C8, S_C16):
    c8 = f2u(math.sqrt(.5))
    a(f's_mov_b32 s{S_C8}, {c8:#x}'); a(f's_mov_b32 s{S_C8+1}, {c8:#x}')
    a(f's_mov_b32 s{S_C16}, {f2u(math.cos(math.pi/8)):#x}'); a(f's_mov_b32 s{S_C16+1}, {f2u(math.sin(math.pi/8)):#x}')

def sincos(a, d, ang):
    a(f'v_cos_f32 v{d}, v{ang}')
    a(f'v_sin_f32 v{d+1}, v{ang}')

RS = 4640

def fft512_wave(a, k, rows, tw1, tw2, tmp, vbase_w1, vbase_r1, vbase_w2, vbase_r2, inv, S_C8, S_C16):
    cur = []
    for regs, off in rows:
        o = k.fft_regs(regs, inv, tmp, S_C8, S_C16)
        for k0 in range(1, 8):
            k.cmul(o[k0], o[k0], tw1[k0], tmp[1], conj=inv)
        for k0 in range(8):
            a(f'ds_write_b64 v{vbase_w1}, {vp(o[k0])} offset:{off + k0*576}')
        cur.append(o)
    a('s_waitcnt lgkmcnt(0)')
    nxt = []
    for (regs, off), o in zip(rows, cur):
        for n1 in range(8):
            a(f'ds_read_b64 {vp(o[n1])}, v{vbase_r1} offset:{off + n1*64}')
    a('s_waitcnt lgkmcnt(0)')
    cur2 = []
    for (regs, off), o in zip(rows, cur):
        o2 = k.fft_regs(o, inv, tmp, S_C8, S_C16)
        for k1 in range(1, 8):
            k.cmul(o2[k1], o2[k1], tw2[k1], tmp[1], conj=inv)
        for k1 in range(8):
            a(f'ds_write_b64 v{vbase_w2}, {vp(o2[k1])} offset:{off + k1*520}')
        cur2.append(o2)
    a('s_waitcnt lgkmcnt(0)')
    for (regs, off), o in zip(rows, cur2):
        for n0 in range(8):
            a(f'ds_read_b64 {vp(o[n0])}, v{vbase_r2} offset:{off + n0*8}')
    a('s_waitcnt lgkmcnt(0)')
    outs = []
    for (regs, off), o in zip(rows, cur2):
        outs.append(k.fft_regs(o, inv, tmp, S_C8, S_C16))
    return outs

def fft512_setup(a, lane, tw1, tw2, vt, vw1, vr1, vw2, vr2, vrowbase):
    a(f'v_cvt_f32_u32 v{vt}, v{lane}')
    for k0 in range(1, 8):
        a(f'v_mul_f32 v{vt+1}, {f2u(-k0/512.):#x}, v{vt}')
        sincos(a, tw1[k0], vt+1)
    a(f'v_and_b32 v{vt+2}, 7, v{lane}')
    a(f'v_cvt_f32_u32 v{vt}, v{vt+2}')
    for k1 in range(1, 8):
        a(f'v_mul_f32 v{vt+1}, {f2u(-k1/64.):#x}, v{vt}')
        sincos(a, tw2[k1], vt+1)
    a(f'v_lshl_add_u32 v{vw1}, v{lane}, 3, v{vrowbase}')
    a(f'v_lshrrev_b32 v{vt}, 3, v{lane}')
    a(f'v_mul_u32_u24 v{vt+1}, 576, v{vt}')
    a(f'v_lshl_add_u32 v{vr1}, v{vt+2}, 3, v{vt+1}')
    a(f'v_add_u32 v{vr1}, v{vr1}, v{vrowbase}')
    a(f'v_mov_b32 v{vw2}, v{vw1}')
    a(f'v_mul_u32_u24 v{vt+1}, 520, v{vt}')
    a(f'v_lshl_add_u32 v{vr2}, v{vt+2}, 6, v{vt+1}')
    a(f'v_add_u32 v{vr2}, v{vr2}, v{vrowbase}')

def gen_row(name='kB_row_kernel', fa=None):
    a = fa if fa is not None else Asm()
    k = K(a)
    if fa is None: a.raw(kernel_header(name))
    S_C8, S_C16 = 12, 14
    a('s_cmp_ge_u32 s2, 256')
    a(f's_cbranch_scc1 {name}_end')
    a('s_load_dwordx2 s[16:17], s[0:1], 72')
    a('s_load_dwordx2 s[18:19], s[0:1], 112')
    consts(a, S_C8, S_C16)
    lane, wv = 1, 2
    a(f'v_and_b32 v{lane}, 63, v0')
    a(f'v_lshrrev_b32 v{wv}, 6, v0')
    RA = list(range(8, 24, 2)); RB = list(range(24, 40, 2))
    tmp = [40, 42]
    tw1 = {i: 44 + 2*(i-1) for i in range(1, 8)}
    tw2 = {i: 58 + 2*(i-1) for i in range(1, 8)}
    vt = 72
    vw1, vr1, vw2, vr2, vrb = 76, 77, 78, 79, 80
    vg = 81
    a(f'v_mul_u32_u24 v{vrb}, {2*RS}, v{wv}')
    a('s_waitcnt lgkmcnt(0)')
    srd(a, 4, 16, 2048*1024*2)
    srd(a, 8, 18, SZ_XT, WS_X1T)
    a(f's_lshl_b32 s20, s2, 14')
    a(f'v_lshlrev_b32 v{vg}, 12, v{wv}')
    a(f'v_lshl_add_u32 v{vg}, v{lane}, 2, v{vg}')
    for r, R in enumerate((RA, RB)):
        for j in range(8):
            a(f'buffer_load_dword v{R[j]+1}, v{vg}, s[4:7], s20 offen offset:{r*2048 + j*256}')
    fft512_setup(a, lane, tw1, tw2, vt, vw1, vr1, vw2, vr2, vrb)
    a('s_waitcnt vmcnt(0)')
    for R in (RA, RB):
        for j in range(8):
            a(f'v_lshlrev_b32 v{R[j]}, 16, v{R[j]+1}')
            a(f'v_and_b32 v{R[j]+1}, 0xffff0000, v{R[j]+1}')
    outs = fft512_wave(a, k, [(RA, 0), (RB, RS)], tw1, tw2, tmp, vw1, vr1, vw2, vr2, False, S_C8, S_C16)
    for r, o in enumerate(outs):
        for k2 in range(8):
            a(f'ds_write_b64 v{vw1}, {vp(o[k2])} offset:{r*RS + k2*512}')
    a(f'v_cmp_eq_u32 vcc, 0, v{lane}')
    a('s_and_saveexec_b64 s[22:23], vcc')
    for r, o in enumerate(outs):
        a(f'ds_write_b64 v{vw1}, {vp(o[0])} offset:{r*RS + 4096}')
    a('s_mov_b64 exec, s[22:23]')
    a('s_waitcnt lgkmcnt(0)')
    a('s_barrier')
    row, f0, vA, vB, vO, ang = 8, 9, 10, 11, 12, 13
    a(f'v_and_b32 v{row}, 7, v0')
    a(f'v_lshrrev_b32 v{f0}, 3, v0')
    a(f'v_mul_u32_u24 v{vA}, {RS}, v{row}')
    a(f'v_lshlrev_b32 v{vB}, 3, v{f0}')
    a(f'v_sub_u32 v{vB}, v{vA}, v{vB}')
    a(f'v_lshl_add_u32 v{vA}, v{f0}, 3, v{vA}')
    a(f'v_lshlrev_b32 v{vO}, 14, v{f0}')
    a(f'v_lshl_add_u32 v{vO}, v{row}, 3, v{vO}')
    a(f's_lshl_b32 s20, s2, 6')
    a(f'v_add_u32 v{vO}, s20, v{vO}')
    a(f'v_cvt_f32_u32 v{ang}, v{f0}')
    a(f'v_mul_f32 v{ang}, {f2u(-1/1024.):#x}, v{ang}')
    NB = 4
    regsA = [16 + 2*i for i in range(NB)]; regsB = [24 + 2*i for i in range(NB)]
    regsW = [32 + 2*i for i in range(NB)]; regsT = [40 + 2*i for i in range(NB)]; regsE = [48 + 2*i for i in range(NB)]
    va = 56
    def body(ilist):
        for b, i in enumerate(ilist):
            a(f'ds_read_b64 {vp(regsA[b])}, v{vA} offset:{i*256}')
            a(f'ds_read_b64 {vp(regsB[b])}, v{vB} offset:{4096 - i*256}')
        for b, i in enumerate(ilist):
            a(f'v_add_f32 v{va+b}, {f2u(-i/32.):#x}, v{ang}')
        for b, i in enumerate(ilist):
            sincos(a, regsW[b], va+b)
        a('s_waitcnt lgkmcnt(0)')
        for b, i in enumerate(ilist):
            A, B = regsA[b], regsB[b]
            a(f'v_pk_add_f32 {vp(regsE[b])}, {vp(A)}, {vp(B)} neg_hi:[0,1]')
            a(f'v_pk_add_f32 {vp(A)}, {vp(A)}, {vp(B)} op_sel:[1,1] op_sel_hi:[0,0] neg_hi:[1,0]')
            k.cmul(B, A, regsW[b], regsT[b])
            k.cadd(regsE[b], regsE[b], B)
        for b, i in enumerate(ilist):
            a(f's_mov_b32 s21, {i*32*16384}')
            a(f'buffer_store_dwordx2 {vp(regsE[b])}, v{vO}, s[8:11], s21 offen')
    for i0 in range(0, 16, NB):
        body(list(range(i0, i0+NB)))
    a(f'v_cmp_gt_u32 vcc, 8, v0')
    a('s_and_saveexec_b64 s[22:23], vcc')
    a(f's_cbranch_execz {name}_end')
    body([16])
    a.label(f'{name}_end')
    a('s_endpgm')
    return a.text(), kernel_desc(name, 88), f'; @launch kernel={name} grid=(256,1,1) block=(256,1,1) lds={8*RS}'

def build(parts, path):
    hdr = ''.join(p[2] + '\n' for p in parts)
    txt = hdr + '.amdgcn_target "amdgcn-amd-amdhsa--gfx950"\n.text\n'
    for p in parts: txt += p[0]
    txt += '.section .rodata,"a"\n.p2align 6\n'
    for p in parts: txt += p[1]
    open(path, 'w').write(txt)

if __name__ == '__main__':
    build([gen_row()], 't_row.s')
```

```python
from asmlib import *
from kB import *

CB, CS = 1216, 72

def gen_col(name='kB_col_kernel', fa=None):
    a = fa if fa is not None else Asm()
    k = K(a)
    if fa is None: a.raw(kernel_header(name))
    S_C8, S_C16 = 12, 14
    a('s_cmp_ge_u32 s2, 257')
    a(f's_cbranch_scc1 {name}_end')
    a('s_load_dwordx2 s[18:19], s[0:1], 112')
    consts(a, S_C8, S_C16)
    a(f's_mov_b32 s28, {f2u(2.0**-22):#x}'); a(f's_mov_b32 s29, {f2u(2.0**-22):#x}')
    X = list(range(8, 40, 2)); tmp = [40, 42]
    tw1 = {i: 44 + 2*(i-1) for i in range(1, 16)}
    tw2 = {i: 74 + 2*(i-1) for i in range(1, 16)}
    Wv = 104
    vt = 120
    vg, vw1, vr1, vr2, vwp = 123, 124, 125, 126, 127
    vT, vH = 6, 7
    a(f'v_and_b32 v{vT}, 127, v0')
    a(f'v_lshrrev_b32 v{vH}, 7, v0')
    a('s_waitcnt lgkmcnt(0)')
    srd(a, 4, 18, SZ_XT, WS_X1T)
    srd(a, 8, 18, SZ_XT, WS_Y1T)
    srd(a, 20, 18, SZ_WP, WS_WP)
    a(f'v_lshlrev_b32 v{vg}, 14, v{vH}')
    a(f'v_lshl_add_u32 v{vg}, v{vT}, 3, v{vg}')
    a('s_lshl_b32 s24, s2, 15')
    for q in range(4):
        a(f's_add_u32 s{30+q}, s24, {q*4096}')
    for n2 in range(16):
        a(f'buffer_load_dwordx2 {vp(X[n2])}, v{vg}, s[4:7], s{30 + n2//4} offen offset:{(n2%4)*1024}')
    a(f'v_lshlrev_b32 v{vwp}, 13, v{vH}')
    a(f'v_lshl_add_u32 v{vwp}, v{vT}, 6, v{vwp}')
    a('s_lshl_b32 s25, s2, 14')
    for q in range(4):
        a(f'buffer_load_dwordx4 v[{Wv+4*q}:{Wv+4*q+3}], v{vwp}, s[20:23], s25 offen offset:{16*q}')
    a(f'v_cvt_f32_u32 v{vt}, v{vT}')
    for i in range(1, 16):
        a(f'v_mul_f32 v{vt+1}, {f2u(-i/2048.):#x}, v{vt}')
        sincos(a, tw1[i], vt+1)
    a(f'v_and_b32 v{vt+2}, 7, v{vT}')
    a(f'v_cvt_f32_u32 v{vt}, v{vt+2}')
    for i in range(1, 16):
        a(f'v_mul_f32 v{vt+1}, {f2u(-i/128.):#x}, v{vt}')
        sincos(a, tw2[i], vt+1)
    a(f'v_mul_u32_u24 v{vH}, {16*CB}, v{vH}')
    a(f'v_lshl_add_u32 v{vw1}, v{vT}, 3, v{vH}')
    a(f'v_lshrrev_b32 v{vt}, 3, v{vT}')
    a(f'v_mul_u32_u24 v{vt}, {CB}, v{vt}')
    a(f'v_add_u32 v{vt}, v{vt}, v{vH}')
    a(f'v_lshl_add_u32 v{vr1}, v{vt+2}, 3, v{vt}')
    a(f'v_mul_u32_u24 v{vr2}, {CS}, v{vt+2}')
    a(f'v_add_u32 v{vr2}, v{vr2}, v{vt}')
    a('s_waitcnt vmcnt(4)')
    o = k.fft_regs(X, False, tmp, S_C8, S_C16)
    for i in range(1, 16): k.cmul(o[i], o[i], tw1[i], tmp[1])
    for i in range(16): a(f'ds_write_b64 v{vw1}, {vp(o[i])} offset:{i*CB}')
    a('s_waitcnt lgkmcnt(0)')
    a('s_barrier')
    for i in range(16): a(f'ds_read_b64 {vp(o[i])}, v{vr1} offset:{i*64}')
    a('s_waitcnt lgkmcnt(0)')
    o = k.fft_regs(o, False, tmp, S_C8, S_C16)
    for i in range(1, 16): k.cmul(o[i], o[i], tw2[i], tmp[1])
    for i in range(16): a(f'ds_write_b64 v{vr1}, {vp(o[i])} offset:{i*CS}')
    a('s_waitcnt lgkmcnt(0)')
    for h in range(2):
        for n0 in range(8):
            a(f'ds_read_b64 {vp(o[8*h+n0])}, v{vr2} offset:{h*8*CS + n0*8}')
    a('s_waitcnt lgkmcnt(0)')
    hs = [k.fft_regs(o[8*h:8*h+8], False, tmp, S_C8, S_C16) for h in range(2)]
    a('s_waitcnt vmcnt(0)')
    wt = vt
    for h in range(2):
        for k2 in range(8):
            w = Wv + 8*h + k2
            a(f'v_lshlrev_b32 v{wt}, 16, v{w}')
            a(f'v_and_b32 v{wt+1}, 0xffff0000, v{w}')
            a(f'v_pk_mul_f32 {vp(wt)}, {vp(wt)}, s[28:29]')
            k.cmul(hs[h][k2], hs[h][k2], wt, tmp[1])
    hs = [k.fft_regs(hs[h], True, tmp, S_C8, S_C16) for h in range(2)]
    for h in range(2):
        for n0 in range(8):
            a(f'ds_write_b64 v{vr2}, {vp(hs[h][n0])} offset:{h*8*CS + n0*8}')
    o = hs[0] + hs[1]
    a('s_waitcnt lgkmcnt(0)')
    for i in range(16): a(f'ds_read_b64 {vp(o[i])}, v{vr1} offset:{i*CS}')
    a('s_waitcnt lgkmcnt(0)')
    for i in range(1, 16): k.cmul(o[i], o[i], tw2[i], tmp[1], conj=True)
    o = k.fft_regs(o, True, tmp, S_C8, S_C16)
    for i in range(16): a(f'ds_write_b64 v{vr1}, {vp(o[i])} offset:{i*64}')
    a('s_waitcnt lgkmcnt(0)')
    a('s_barrier')
    for i in range(16): a(f'ds_read_b64 {vp(o[i])}, v{vw1} offset:{i*CB}')
    a('s_waitcnt lgkmcnt(0)')
    for i in range(1, 16): k.cmul(o[i], o[i], tw1[i], tmp[1], conj=True)
    o = k.fft_regs(o, True, tmp, S_C8, S_C16)
    for n2 in range(16):
        a(f'buffer_store_dwordx2 {vp(o[n2])}, v{vg}, s[8:11], s{30 + n2//4} offen offset:{(n2%4)*1024}')
    a.label(f'{name}_end')
    a('s_endpgm')
    return a.text(), kernel_desc(name, 128), f'; @launch kernel={name} grid=(257,1,1) block=(256,1,1) lds={32*CB}'

def gen_wprep(name='kB_wprep_kernel', fa=None):
    a = fa if fa is not None else Asm()
    if fa is None: a.raw(kernel_header(name))
    a('s_cmp_ge_u32 s2, 144')
    a(f's_cbranch_scc1 {name}_end')
    a('s_load_dwordx2 s[16:17], s[0:1], 80')
    a('s_load_dwordx2 s[18:19], s[0:1], 88')
    a('s_load_dwordx2 s[24:25], s[0:1], 112')
    a('s_and_b32 s26, s2, 15')
    a('s_lshr_b32 s27, s2, 4')
    lane, wv = 1, 2
    a(f'v_and_b32 v{lane}, 63, v0')
    a(f'v_lshrrev_b32 v{wv}, 6, v0')
    a('s_waitcnt lgkmcnt(0)')
    srd(a, 4, 16, 2048*513*2)
    srd(a, 8, 18, 2048*513*2)
    srd(a, 12, 24, SZ_WP, WS_WP)
    vg, vl = 3, 4
    a('s_mul_i32 s28, s26, 1026')
    a('s_lshl_b32 s29, s27, 7')
    a('s_add_u32 s28, s28, s29')
    a(f'v_mul_u32_u24 v{vg}, {16*1026}, v{wv}')
    a(f'v_lshl_add_u32 v{vg}, v{lane}, 1, v{vg}')
    a(f'v_mul_u32_u24 v{vl}, 516, v{lane}')
    a(f'v_lshl_add_u32 v{vl}, v{wv}, 6, v{vl}')
    for i0 in range(0, 32, 8):
        for j in range(8):
            i = i0 + j
            a(f's_add_u32 s30, s28, {i*64*1026}')
            a(f'buffer_load_ushort v{8+j}, v{vg}, s[4:7], s30 offen')
            a(f'buffer_load_ushort v{16+j}, v{vg}, s[8:11], s30 offen')
        a('s_waitcnt vmcnt(0)')
        for j in range(8):
            i = i0 + j
            a(f'v_lshl_or_b32 v{8+j}, v{16+j}, 16, v{8+j}')
            p = (4*(i & 1))*16 + ((i & 3) >> 1)*8 + (i >> 2)
            a(f'ds_write_b32 v{vl}, v{8+j} offset:{p*4}')
    a('s_waitcnt lgkmcnt(0)')
    a('s_barrier')
    vr, vo = 5, 6
    a(f'v_lshrrev_b32 v7, 5, v0')
    a(f'v_and_b32 v24, 31, v0')
    a(f'v_mul_u32_u24 v{vr}, 516, v7')
    a(f'v_lshl_add_u32 v{vr}, v24, 4, v{vr}')
    a(f'v_lshlrev_b32 v{vo}, 13, v7')
    a(f'v_lshl_add_u32 v{vo}, v24, 4, v{vo}')
    a('s_lshl_b32 s28, s27, 19')
    a('s_lshl_b32 s29, s26, 9')
    a('s_add_u32 s28, s28, s29')
    for i in range(8):
        a(f'ds_read_b128 v[{32+4*i}:{35+4*i}], v{vr} offset:{i*8*516}')
    a('s_waitcnt lgkmcnt(0)')
    for i in range(8):
        a(f's_add_u32 s30, s28, {i*8*8192}')
        a(f'buffer_store_dwordx4 v[{32+4*i}:{35+4*i}], v{vo}, s[12:15], s30 offen')
    a.label(f'{name}_end')
    a('s_endpgm')
    return a.text(), kernel_desc(name, 64), f'; @launch kernel={name} grid=(144,1,1) block=(256,1,1) lds={64*516}'

def gen_irow(name='kB_irow_kernel', fa=None):
    a = fa if fa is not None else Asm()
    k = K(a)
    if fa is None: a.raw(kernel_header(name))
    S_C8, S_C16 = 12, 14
    a('s_cmp_ge_u32 s2, 256')
    a(f's_cbranch_scc1 {name}_end')
    a('s_load_dwordx2 s[16:17], s[0:1], 96')
    a('s_load_dwordx2 s[18:19], s[0:1], 112')
    consts(a, S_C8, S_C16)
    lane, wv = 1, 2
    a(f'v_and_b32 v{lane}, 63, v0')
    a(f'v_lshrrev_b32 v{wv}, 6, v0')
    a('s_waitcnt lgkmcnt(0)')
    srd(a, 4, 16, 2048*2048*2)
    srd(a, 8, 18, SZ_XT, WS_Y1T)
    row, f0, vL, vO = 8, 9, 10, 11
    a(f'v_and_b32 v{row}, 7, v0')
    a(f'v_lshrrev_b32 v{f0}, 3, v0')
    a(f'v_mul_u32_u24 v{vL}, {RS}, v{row}')
    a(f'v_lshl_add_u32 v{vL}, v{f0}, 3, v{vL}')
    a(f'v_lshlrev_b32 v{vO}, 14, v{f0}')
    a(f'v_lshl_add_u32 v{vO}, v{row}, 3, v{vO}')
    a(f's_lshl_b32 s20, s2, 6')
    a(f'v_add_u32 v{vO}, s20, v{vO}')
    for i in range(16):
        a(f's_mov_b32 s21, {i*32*16384}')
        a(f'buffer_load_dwordx2 {vp(16+2*i)}, v{vO}, s[8:11], s21 offen')
    a(f's_mov_b32 s21, {16*32*16384}')
    a(f'buffer_load_dwordx2 {vp(48)}, v{vO}, s[8:11], s21 offen')
    a('s_waitcnt vmcnt(0)')
    a(f'v_cmp_gt_u32 vcc, 8, v0')
    a(f'v_cndmask_b32 v17, v17, 0, vcc')
    a(f'v_mov_b32 v49, 0')
    for i in range(16):
        a(f'ds_write_b64 v{vL}, {vp(16+2*i)} offset:{i*256}')
    a('s_and_saveexec_b64 s[22:23], vcc')
    a(f'ds_write_b64 v{vL}, {vp(48)} offset:4096')
    a('s_mov_b64 exec, s[22:23]')
    a('s_waitcnt lgkmcnt(0)')
    a('s_barrier')
    RA = list(range(8, 24, 2)); RB = list(range(24, 40, 2))
    tmp = [40, 42]
    tw1 = {i: 44 + 2*(i-1) for i in range(1, 8)}
    tw2 = {i: 58 + 2*(i-1) for i in range(1, 8)}
    vt = 72
    vw1, vr1, vw2, vr2, vrb = 76, 77, 78, 79, 80
    vB = 81; vg = 82
    a(f'v_mul_u32_u24 v{vrb}, {2*RS}, v{wv}')
    fft512_setup(a, lane, tw1, tw2, vt, vw1, vr1, vw2, vr2, vrb)
    a(f'v_lshlrev_b32 v{vB}, 3, v{lane}')
    a(f'v_sub_u32 v{vB}, v{vrb}, v{vB}')
    a(f'v_cvt_f32_u32 v{vt}, v{lane}')
    a(f'v_mul_f32 v{vt}, {f2u(1/1024.):#x}, v{vt}')
    Bt = [84, 86]; Wt = 88; Tt = 90
    for j in range(8):
        for r, R in enumerate((RA, RB)):
            a(f'ds_read_b64 {vp(R[j])}, v{vw1} offset:{r*RS + j*512}')
            a(f'ds_read_b64 {vp(Bt[r])}, v{vB} offset:{r*RS + 4096 - j*512}')
        a(f'v_add_f32 v{vt+1}, {f2u(j/16.):#x}, v{vt}')
        sincos(a, Wt, vt+1)
        a('s_waitcnt lgkmcnt(0)')
        for r, R in enumerate((RA, RB)):
            A, B = R[j], Bt[r]
            a(f'v_pk_add_f32 {vp(Tt)}, {vp(A)}, {vp(B)} neg_lo:[0,1]')
            a(f'v_pk_add_f32 {vp(A)}, {vp(A)}, {vp(B)} neg_hi:[0,1]')
            k.cmul(B, Tt, Wt, tmp[0])
            a(f'v_pk_add_f32 {vp(A)}, {vp(A)}, {vp(B)} op_sel:[0,1] op_sel_hi:[1,0] neg_lo:[0,1]')
    outs = fft512_wave(a, k, [(RA, 0), (RB, RS)], tw1, tw2, tmp, vw1, vr1, vw2, vr2, True, S_C8, S_C16)
    a(f'v_lshlrev_b32 v{vg}, 13, v{wv}')
    a(f'v_lshl_add_u32 v{vg}, v{lane}, 2, v{vg}')
    a('s_lshl_b32 s20, s2, 15')
    a('s_add_u32 s21, s20, 4096')
    for r, o in enumerate(outs):
        for j in range(8):
            a(f'v_cvt_pk_bf16_f32 v{o[j]}, v{o[j]}, v{o[j]+1}')
            a(f'buffer_store_dword v{o[j]}, v{vg}, s[4:7], s{20+r} offen offset:{2048 + j*256}')
    a.label(f'{name}_end')
    a('s_endpgm')
    return a.text(), kernel_desc(name, 96), f'; @launch kernel={name} grid=(256,1,1) block=(256,1,1) lds={8*RS}'

if __name__ == '__main__':
    build([gen_row(), gen_wprep(), gen_col(), gen_irow()], 't_B.s')
```

```python
from kB import *
from kB2 import *
from kA2 import *
from kA4 import *
import sys

def fused(name, roles, vgpr, lds):
    a = Asm()
    a.raw(kernel_header(name))
    cum = 0
    for i, (cnt, emit) in enumerate(roles):
        cum += cnt
        a(f's_cmp_lt_u32 s2, {cum}')
        a(f's_cbranch_scc1 {name}_r{i}')
    a('s_endpgm')
    cum = 0
    for i, (cnt, emit) in enumerate(roles):
        a.label(f'{name}_r{i}')
        if cum: a(f's_sub_u32 s2, s2, {cum}')
        emit(a, f'{name}_b{i}')
        cum += cnt
    return a.text(), kernel_desc(name, vgpr, 100), f'; @launch kernel={name} grid=({cum},1,1) block=(256,1,1) lds={lds}'

def build_final(out):
    L1 = fused('k1_kernel', [(256, lambda a, n: gen_row(n, fa=a)), (1024, lambda a, n: body_kgen(a, n)),
                             (144, lambda a, n: gen_wprep(n, fa=a)), (512, lambda a, n: gen_utr(n, fa=a))], 120, 8*RS)
    L2 = fused('k2_kernel', [(257, lambda a, n: gen_col(n, fa=a)), (256, lambda a, n: gen_conv2(n, fa=a))], 180, max(32*CB, 4*CH_))
    L3 = fused('k3_kernel', [(256, lambda a, n: gen_irow(n, fa=a)), (512, lambda a, n: gen_aout(n, fa=a))], 96, 8*RS)
    build([L1, L2, L3], out)

if __name__ == '__main__':
    build_final(sys.argv[1] if len(sys.argv) > 1 else 't_all.s')
```

```python
from asmlib import *
from kB import srd, build
from kA import WS_R, SZ_R, LOG2E, stamp, stamp_dump
import math

WS_UT = 0x1D00000
WS_YT = 0x2200000
SZ_T = 1024*2048*2

def gen_utr(name='kA_utr_kernel', fa=None):
    a = fa if fa is not None else Asm()
    if fa is None: a.raw(kernel_header(name))
    a('s_cmp_ge_u32 s2, 512')
    a(f's_cbranch_scc1 {name}_end')
    a('s_load_dwordx2 s[16:17], s[0:1], 0')
    a('s_load_dwordx2 s[18:19], s[0:1], 112')
    a('s_and_b32 s20, s2, 15')
    a('s_lshr_b32 s21, s2, 4')
    a('s_waitcnt lgkmcnt(0)')
    srd(a, 4, 16, 2048*1024*2)
    srd(a, 8, 18, SZ_T, WS_UT)
    a('v_lshrrev_b32 v1, 3, v0')
    a('v_and_b32 v2, 7, v0')
    a('v_lshlrev_b32 v3, 11, v1')
    a('v_lshl_add_u32 v3, v2, 4, v3')
    a('s_lshl_b32 s22, s21, 17')
    a('s_lshl_b32 s23, s20, 7')
    a('s_add_u32 s22, s22, s23')
    a('s_add_u32 s23, s22, 65536')
    a('buffer_load_dwordx4 v[8:11], v3, s[4:7], s22 offen')
    a('buffer_load_dwordx4 v[12:15], v3, s[4:7], s23 offen')
    a('v_mul_u32_u24 v4, 1056, v2')
    a('v_lshl_add_u32 v4, v1, 1, v4')
    a('s_waitcnt vmcnt(0)')
    for h in range(2):
        for j in range(8):
            op = 'ds_write_b16_d16_hi' if j & 1 else 'ds_write_b16'
            a(f'{op} v4, v{8+4*h+(j>>1)} offset:{j*132 + 64*h}')
    a('s_waitcnt lgkmcnt(0)')
    a('s_barrier')
    a('v_lshrrev_b32 v1, 2, v0')
    a('v_and_b32 v2, 3, v0')
    a('v_mul_u32_u24 v4, 132, v1')
    a('v_lshl_add_u32 v4, v2, 5, v4')
    a('ds_read_b128 v[8:11], v4')
    a('ds_read_b128 v[12:15], v4 offset:16')
    a('v_lshlrev_b32 v3, 12, v1')
    a('v_lshl_add_u32 v3, v2, 5, v3')
    a('s_lshl_b32 s22, s20, 18')
    a('s_lshl_b32 s23, s21, 7')
    a('s_add_u32 s22, s22, s23')
    a('s_waitcnt lgkmcnt(0)')
    a('buffer_store_dwordx4 v[8:11], v3, s[8:11], s22 offen')
    a('buffer_store_dwordx4 v[12:15], v3, s[8:11], s22 offen offset:16')
    a.label(f'{name}_end')
    a('s_endpgm')
    return a.text(), kernel_desc(name, 16), f'; @launch kernel={name} grid=(512,1,1) block=(256,1,1) lds={64*132}'

def gen_aout(name='kA_out_kernel', fa=None):
    a = fa if fa is not None else Asm()
    if fa is None: a.raw(kernel_header(name))
    a('s_cmp_ge_u32 s2, 512')
    a(f's_cbranch_scc1 {name}_end')
    a('s_load_dwordx2 s[16:17], s[0:1], 0')
    a('s_load_dwordx2 s[18:19], s[0:1], 112')
    a('s_load_dwordx2 s[24:25], s[0:1], 64')
    a('s_load_dwordx2 s[26:27], s[0:1], 96')
    a('s_and_b32 s20, s2, 15')
    a('s_lshr_b32 s21, s2, 4')
    a('s_waitcnt lgkmcnt(0)')
    srd(a, 4, 16, 2048*1024*2)
    srd(a, 8, 18, SZ_T, WS_YT)
    srd(a, 12, 24, 2048)
    srd(a, 28, 26, 2048*2048*2)
    a('v_lshrrev_b32 v1, 2, v0')
    a('v_and_b32 v2, 3, v0')
    a('v_lshlrev_b32 v3, 12, v1')
    a('v_lshl_add_u32 v3, v2, 5, v3')
    a('s_lshl_b32 s22, s20, 18')
    a('s_lshl_b32 s23, s21, 7')
    a('s_add_u32 s22, s22, s23')
    a('buffer_load_dwordx4 v[8:11], v3, s[8:11], s22 offen')
    a('buffer_load_dwordx4 v[12:15], v3, s[8:11], s22 offen offset:16')
    a('v_mul_u32_u24 v4, 132, v1')
    a('v_lshl_add_u32 v4, v2, 5, v4')
    a('v_lshrrev_b32 v5, 3, v0')
    a('v_and_b32 v6, 7, v0')
    a('v_lshlrev_b32 v7, 11, v5')
    a('v_lshl_add_u32 v7, v6, 4, v7')
    a('s_lshl_b32 s22, s21, 17')
    a('s_lshl_b32 s23, s20, 7')
    a('s_add_u32 s22, s22, s23')
    a('s_add_u32 s32, s22, 65536')
    a('buffer_load_dwordx4 v[16:19], v7, s[4:7], s22 offen')
    a('buffer_load_dwordx4 v[20:23], v7, s[4:7], s32 offen')
    a('v_lshlrev_b32 v28, 4, v6')
    a('buffer_load_dwordx4 v[24:27], v28, s[12:15], s23 offen')
    a('s_waitcnt vmcnt(3)')
    a('ds_write_b128 v4, v[8:11]')
    a('ds_write_b128 v4, v[12:15] offset:16')
    a('s_waitcnt lgkmcnt(0)')
    a('s_barrier')
    a('v_mul_u32_u24 v4, 1056, v6')
    a('v_lshl_add_u32 v4, v5, 1, v4')
    for h in range(2):
        for j in range(8):
            a(f'ds_read_u16 v{32+8*h+j}, v4 offset:{j*132 + 64*h}')
    a('v_lshlrev_b32 v7, 12, v5')
    a('v_lshl_add_u32 v7, v6, 4, v7')
    a('s_lshl_b32 s22, s21, 18')
    a('s_add_u32 s22, s22, s23')
    a('s_add_u32 s32, s22, 131072')
    a('s_waitcnt vmcnt(0) lgkmcnt(0)')
    for h in range(2):
        for jj in range(4):
            u = 16 + 4*h + jj; dk = 24 + jj
            a(f'v_lshlrev_b32 v48, 16, v{u}')
            a(f'v_and_b32 v49, 0xffff0000, v{u}')
            a(f'v_lshlrev_b32 v50, 16, v{dk}')
            a(f'v_and_b32 v51, 0xffff0000, v{dk}')
            a(f'v_mul_f32 v48, v48, v50')
            a(f'v_mul_f32 v49, v49, v51')
            a(f'v_cvt_pk_bf16_f32 v48, v48, v49')
            a(f'v_lshlrev_b32 v49, 16, v48')
            a(f'v_and_b32 v50, 0xffff0000, v48')
            a(f'v_lshlrev_b32 v51, 16, v{32+8*h+2*jj}')
            a(f'v_lshlrev_b32 v52, 16, v{33+8*h+2*jj}')
            a(f'v_add_f32 v49, v49, v51')
            a(f'v_add_f32 v50, v50, v52')
            a(f'v_cvt_pk_bf16_f32 v{56+4*h+jj}, v49, v50')
        a(f'buffer_store_dwordx4 v[{56+4*h}:{59+4*h}], v7, s[28:31], s{22 if h == 0 else 32} offen')
    a.label(f'{name}_end')
    a('s_endpgm')
    return a.text(), kernel_desc(name, 64), f'; @launch kernel={name} grid=(512,1,1) block=(256,1,1) lds={64*132}'

RSTR = 4160
UB_ = 4640
CH_ = 2*4160 + UB_

def gen_conv2(name='kA_conv_kernel', waves=4, diag=False, fa=None):
    a = fa if fa is not None else Asm()
    if fa is None: a.raw(kernel_header(name))
    nwg = 1024 // waves
    a(f's_cmp_ge_u32 s2, {nwg}')
    a(f's_cbranch_scc1 {name}_end')
    a('s_load_dwordx2 s[22:23], s[0:1], 112')
    stamp(a, diag, 0)
    lane, wv = 1, 2
    a(f'v_and_b32 v{lane}, 63, v0')
    a(f'v_lshrrev_b32 v{wv}, 6, v0')
    a('s_waitcnt lgkmcnt(0)')
    srd(a, 4, 22, SZ_T, WS_UT)
    srd(a, 8, 22, SZ_T, WS_YT)
    srd(a, 12, 22, 1024*RSTR, WS_R)
    a(f's_mul_i32 s24, s2, {waves*4096}')
    a(f's_mul_i32 s25, s2, {waves*RSTR}')
    a('s_add_u32 s26, s25, 4096')
    a(f'v_lshlrev_b32 v4, 12, v{wv}')
    a(f'v_lshl_add_u32 v4, v{lane}, 4, v4')
    UR = 16
    for i in range(4):
        a(f'buffer_load_dwordx4 v[{UR+4*i}:{UR+3+4*i}], v4, s[4:7], s24 offen offset:{1024*i}')
    a(f'v_mul_u32_u24 v4, {RSTR}, v{wv}')
    a(f'v_lshl_add_u32 v4, v{lane}, 4, v4')
    XR = 32
    for i in range(5):
        if i == 4:
            a(f'v_cmp_gt_u32 vcc, 4, v{lane}')
            a('s_and_saveexec_b64 s[28:29], vcc')
        for sh in range(2):
            r = XR + 8*i + 4*sh
            if i < 4:
                a(f'buffer_load_dwordx4 v[{r}:{r+3}], v4, s[12:15], s25 offen offset:{1024*i + 4*sh}')
            else:
                a(f'buffer_load_dwordx4 v[{r}:{r+3}], v4, s[12:15], s26 offen offset:{4*sh}')
    a('s_mov_b64 exec, s[28:29]')
    a('v_mov_b32 v8, 0'); a('v_mov_b32 v9, 0')
    a(f'v_mul_u32_u24 v5, {CH_}, v{wv}')
    a(f'v_lshl_add_u32 v7, v{lane}, 3, v5')
    a(f'ds_write_b64 v7, v[8:9] offset:{2*4160}')
    a('s_and_saveexec_b64 s[28:29], vcc')
    a(f'ds_write_b64 v7, v[8:9] offset:{2*4160 + 512}')
    a('s_mov_b64 exec, s[28:29]')
    a(f'v_lshl_add_u32 v7, v{lane}, 4, v5')
    a('s_waitcnt vmcnt(10)')
    for i in range(4):
        a(f'ds_write_b128 v7, v[{UR+4*i}:{UR+3+4*i}] offset:{2*4160 + 544 + 1024*i}')
    for i in range(5):
        a(f's_waitcnt vmcnt({8 - 2*i})')
        if i == 4:
            a('s_and_saveexec_b64 s[28:29], vcc')
        X0, X2 = XR + 8*i, XR + 8*i + 4
        for j in range(4):
            a(f'v_alignbyte_b32 v{X2+j}, v{X2+j}, v{X0+j}, 2')
        a(f'ds_write_b128 v7, v[{X0}:{X0+3}] offset:{1024*i}')
        a(f'ds_write_b128 v7, v[{X2}:{X2+3}] offset:{4160 + 1024*i}')
    a('s_mov_b64 exec, s[28:29]')
    vA, vB = 4, 3
    a(f'v_and_b32 v8, 15, v{lane}')
    a(f'v_lshrrev_b32 v9, 5, v{lane}')
    a(f'v_bfe_u32 v10, v{lane}, 4, 1')
    a('v_lshlrev_b32 v11, 4, v9')
    a('v_add_u32 v11, v11, v8')
    a('v_lshlrev_b32 v12, 3, v10')
    a('v_sub_u32 v11, v12, v11')
    a(f'v_add_u32 v11, {2047 - 32*63}, v11')
    a('v_and_b32 v13, 1, v11')
    a('v_sub_u32 v11, v11, v13')
    a('v_mul_u32_u24 v13, 4160, v13')
    a('v_lshl_add_u32 v11, v11, 1, v13')
    a(f'v_add_u32 v14, v11, v5')
    a('v_lshlrev_b32 v11, 4, v8')
    a('v_lshlrev_b32 v13, 4, v9')
    a('v_sub_u32 v11, v11, v13')
    a('v_add_u32 v11, v11, v12')
    a('v_add_u32 v11, 16, v11')
    a(f'v_lshl_add_u32 v{vB}, v11, 1, v5')
    for q in range(4): a(f'v_add_u32 v{vA+q}, {1024*q}, v14')
    a('s_waitcnt lgkmcnt(0)')
    stamp(a, diag, 1)
    ACC = [8 + 4*b for b in range(8)]
    Bs = [[40 + 4*i for i in range(8)], [72 + 4*i for i in range(8)]]
    As = [[104 + 4*i for i in range(8)], [136 + 4*i for i in range(8)]]
    for b in range(8):
        for r in range(4): a(f'v_mov_b32 v{ACC[b]+r}, 0')
    def ldB(c0):
        s = c0 & 1
        for i in range(8):
            a(f'ds_read_b128 v[{Bs[s][i]}:{Bs[s][i]+3}], v{vB} offset:{2*4160 + 2*(256 + 256*i - 32*c0)}')
    def ldA(c0):
        s = c0 & 1
        for j in range(8):
            c = c0 + 8*j
            o = (63 - c)*16
            base = vA + o // 256; o = o % 256
            a(f'ds_read2_b32 v[{As[s][j]}:{As[s][j]+1}], v{base} offset0:{o} offset1:{o+1}')
            a(f'ds_read2_b32 v[{As[s][j]+2}:{As[s][j]+3}], v{base} offset0:{o+2} offset1:{o+3}')
            if j == 3: a('s_waitcnt lgkmcnt(7)')
    ldB(0); a('s_waitcnt lgkmcnt(7)'); ldA(0)
    a('s_waitcnt lgkmcnt(0)')
    for c0 in range(8):
        s = c0 & 1
        ml = [(j, b) for j in range(8) for b in range(j, 8)]
        if c0 < 7: ldB(c0+1)
        for idx, (j, b) in enumerate(ml):
            if idx == 12 and c0 < 7:
                a('s_waitcnt lgkmcnt(7)')
                ldA(c0+1)
            a(f'v_mfma_f32_16x16x32_bf16 v[{ACC[b]}:{ACC[b]+3}], v[{As[s][j]}:{As[s][j]+3}], v[{Bs[s][b-j]}:{Bs[s][b-j]+3}], v[{ACC[b]}:{ACC[b]+3}]')
        a('s_waitcnt lgkmcnt(0)')
    stamp(a, diag, 2)
    a(f'v_lshrrev_b32 v41, 4, v{lane}')
    a(f'v_and_b32 v40, 15, v{lane}')
    a('v_lshlrev_b32 v40, 5, v40')
    a('v_lshl_add_u32 v40, v41, 3, v40')
    a(f'v_lshl_add_u32 v40, v{wv}, 12, v40')
    for b in range(8):
        a(f'v_cvt_pk_bf16_f32 v{48+2*b}, v{ACC[b]}, v{ACC[b]+1}')
        a(f'v_cvt_pk_bf16_f32 v{49+2*b}, v{ACC[b]+2}, v{ACC[b]+3}')
        a(f'buffer_store_dwordx2 v[{48+2*b}:{49+2*b}], v40, s[8:11], s24 offen offset:{512*b}')
    if diag:
        a('s_waitcnt vmcnt(0)')
        stamp(a, diag, 3)
        stamp_dump(a, 4, name)
    a.label(f'{name}_end')
    a('s_endpgm')
    return a.text(), kernel_desc(name, 168, 100), f'; @launch kernel={name} grid=({nwg},1,1) block=({64*waves},1,1) lds={waves*CH_}'

if __name__ == '__main__':
    from kA import gen_kgen
    build([gen_kgen(), gen_utr(), gen_conv2(diag=True), gen_aout()], 't_A.s')
```

```python
from asmlib import *
from kB import srd, build
from kA import WS_R, LOG2E, stamp, stamp_dump
import math

TS = 528
LA = 0; LB = 32*TS; LKD = 64*TS
L_KGEN = LKD + 4*656

def body_kgen(a, name, diag=False):
    k = K(a)
    a('s_load_dwordx4 s[16:19], s[0:1], 8')
    a('s_load_dwordx4 s[20:23], s[0:1], 24')
    a('s_load_dwordx4 s[24:27], s[0:1], 40')
    a('s_load_dwordx2 s[28:29], s[0:1], 56')
    a('s_load_dwordx2 s[30:31], s[0:1], 112')
    a('v_lshrrev_b32 v3, 6, v0')
    a('v_and_b32 v10, 127, v0')
    a('v_readfirstlane_b32 s9, v3')
    a('s_waitcnt lgkmcnt(0)')
    for i, b in enumerate((16, 18, 20, 22, 24, 26)):
        srd(a, 32 + 4*i, b, 1024*128*2)
    srd(a, 56, 28, 2048)
    srd(a, 60, 30, 1024*4160, WS_R)
    a('s_lshl_b32 s6, s2, 8')
    a('v_lshlrev_b32 v1, 1, v10')
    for i in range(6):
        a(f'buffer_load_ushort v{2+i}, v1, s[{32+4*i}:{35+4*i}], s6 offen')
    a('s_lshl_b32 s7, s2, 1')
    a('v_mov_b32 v9, 0')
    a('buffer_load_ushort v8, v9, s[56:59], s7 offen')
    a('s_waitcnt vmcnt(0)')
    for i in range(7):
        a(f'v_lshlrev_b32 v{2+i}, 16, v{2+i}')
    a(f'v_mul_f32 v8, {f2u(LOG2E):#x}, v8')
    a('v_exp_f32 v8, v8')
    a('v_cvt_pk_bf16_f32 v8, v8, v8')
    a('v_lshlrev_b32 v8, 16, v8')
    AL, BL, C = 12, 13, 14
    a('v_mul_f32 v2, v8, v2')
    a(f'v_mul_f32 v{AL}, {f2u(LOG2E):#x}, v2')
    a('v_mul_f32 v3, v8, v3')
    a(f'v_mul_f32 v{BL}, {f2u(1/(2*math.pi)):#x}, v3')
    a('v_mul_f32 v4, v8, v4')
    a('v_mul_f32 v5, v8, v5')
    a(f'v_mul_f32 v{C}, v6, v4')
    a(f'v_fma_f32 v{C}, -v7, v5, v{C}')
    a(f'v_mul_f32 v{C+1}, v6, v5')
    a(f'v_fma_f32 v{C+1}, v7, v4, v{C+1}')
    Z = {1 << p: 16 + 2*p for p in range(11)}
    def anchors(ps):
        for n_, p in enumerate(ps):
            m = float(1 << p); t = 40 + 4*(n_ & 3)
            a(f'v_mul_f32 v{t}, {f2u(m):#x}, v{AL}')
            a(f'v_mul_f32 v{t+1}, {f2u(m):#x}, v{BL}')
            a(f'v_fract_f32 v{t+1}, v{t+1}')
        for n_, p in enumerate(ps):
            t = 40 + 4*(n_ & 3)
            a(f'v_exp_f32 v{t}, v{t}')
            a(f'v_cos_f32 v{t+2}, v{t+1}')
            a(f'v_sin_f32 v{t+3}, v{t+1}')
        for n_, p in enumerate(ps):
            t = 40 + 4*(n_ & 3); z = Z[1 << p]
            a(f'v_mul_f32 v{z}, v{t}, v{t+2}')
            a(f'v_mul_f32 v{z+1}, v{t}, v{t+3}')
    vL = 1
    a(f'v_lshlrev_b32 v{vL}, 2, v10')
    T = [76, 78]; PK = [84, 85]; P = [60, 62]
    a('s_cmp_ge_u32 s9, 2')
    a(f's_cbranch_scc1 {name}_roleA')
    anchors([0, 1, 2, 3])
    a('v_mov_b32 v56, 0x3f80')
    lane = 2
    a(f'v_and_b32 v{lane}, 63, v0')
    a(f'v_and_b32 v4, 15, v{lane}')
    a(f'v_lshrrev_b32 v5, 4, v{lane}')
    a(f'v_mul_u32_u24 v6, {TS}, v4')
    a(f'v_lshl_add_u32 v6, v5, 4, v6')
    a(f's_mul_i32 s10, s9, {16*TS}')
    a(f'v_add_u32 v6, s10, v6')
    a('v_lshl_add_u32 v7, v5, 6, v4')
    a('v_lshlrev_b32 v7, 2, v7')
    for ph in range(2):
        for hs in range(2):
            s = 2*ph + hs
            a(f'ds_write_b32 v{vL}, v56 offset:{LB + 16*hs*TS}')
            a(f'v_mov_b32 v{P[hs]}, v{Z[1<<s]}'); a(f'v_mov_b32 v{P[hs]+1}, v{Z[1<<s]+1}')
        for step in range(15):
            for hs in range(2):
                s = 2*ph + hs; p = P[hs]
                a(f'v_cvt_pk_bf16_f32 v{PK[hs]}, v{p}, v{p+1}')
                a(f'ds_write_b32 v{vL}, v{PK[hs]} offset:{LB + (16*hs + step + 1)*TS}')
                if step < 14: k.cmul(p, p, Z[1 << s], T[hs])
        a('s_waitcnt lgkmcnt(0)')
        a('s_barrier')
        ACC = 8
        for r in range(4): a(f'v_mov_b32 v{ACC+r}, 0')
        for qb in range(2):
            for q4 in range(4):
                q = 4*qb + q4
                a(f'ds_read_b128 v[{88+8*q4}:{91+8*q4}], v6 offset:{LA + q*64}')
                a(f'ds_read_b128 v[{92+8*q4}:{95+8*q4}], v6 offset:{LB + q*64}')
            a('s_waitcnt lgkmcnt(0)')
            for q4 in range(4):
                a(f'v_mfma_f32_16x16x32_bf16 v[{ACC}:{ACC+3}], v[{88+8*q4}:{91+8*q4}], v[{92+8*q4}:{95+8*q4}], v[{ACC}:{ACC+3}]')
        lw1 = f'{name}_k{ph}w1'; lwd = f'{name}_k{ph}d'
        a('s_cmp_eq_u32 s9, 1')
        a(f's_cbranch_scc1 {lw1}')
        s = 2*ph
        if s == 0:
            for r in range(4):
                a(f'ds_write_b32 v7, v{ACC+r} offset:{LKD + 64*r}')
        else:
            a('v_cmp_gt_u32 vcc, 2, v5')
            a('s_and_saveexec_b64 s[4:5], vcc')
            for r in range(4):
                a(f'ds_write_b32 v7, v{ACC+r} offset:{LKD + 4*(128+128*s) + 64*r}')
            a('s_mov_b64 exec, s[4:5]')
        a(f's_branch {lwd}')
        a.label(lw1)
        a.nop(8)
        s = 2*ph + 1
        a('v_cmp_gt_u32 vcc, 2, v5')
        a('s_and_saveexec_b64 s[4:5], vcc')
        for r in range(4):
            a(f'ds_write_b32 v7, v{ACC+r} offset:{LKD + 4*(128+128*s) + 64*r}')
        a('s_mov_b64 exec, s[4:5]')
        if s == 3:
            a(f'v_cmp_eq_u32 vcc, 32, v{lane}')
            a('s_and_saveexec_b64 s[4:5], vcc')
            a(f'ds_write_b32 v7, v{ACC} offset:{LKD + 4*512}')
            a('s_mov_b64 exec, s[4:5]')
        a.label(lwd)
        a('s_waitcnt lgkmcnt(0)')
        a('s_barrier')
    a(f's_branch {name}_expand')
    a.label(f'{name}_roleA')
    anchors([4, 5, 6, 7]); anchors([8, 9, 10])
    nrowsA = {0: 16, 1: 8, 2: 8, 3: 9}
    for ph in range(2):
        for hs in range(2):
            s = 2*ph + hs
            if s == 0:
                a(f'v_mov_b32 v{P[hs]}, v{C}'); a(f'v_mov_b32 v{P[hs]+1}, v{C+1}')
            else:
                k.cmul(P[hs], C, Z[128 << s], T[hs])
        for step in range(16):
            for hs in range(2):
                s = 2*ph + hs; p = P[hs]
                if step < nrowsA[s]:
                    a(f'v_cvt_pk_bf16_f32 v{PK[hs]}, v{p}, -v{p+1}')
                    a(f'ds_write_b32 v{vL}, v{PK[hs]} offset:{LA + (16*hs + step)*TS}')
                    if step < nrowsA[s] - 1: k.cmul(p, p, Z[16 << s], T[hs])
        a('s_waitcnt lgkmcnt(0)')
        a('s_barrier')
        a('s_barrier')
    a.label(f'{name}_expand')
    a(f's_mov_b32 s8, {LKD}')
    a('v_lshlrev_b32 v1, 3, v0')
    a('v_sub_u32 v1, 2047, v1')
    for j in range(8):
        r = 16 + j; e = 24 + j
        a(f'v_subrev_u32 v{r}, {j}, v1')
        a(f'v_cvt_f32_u32 v{r}, v{r}')
        a(f'v_cvt_pk_bf16_f32 v{r}, v{r}, v{r}')
        a(f'v_bfe_u32 v{e}, v{r}, 7, 8')
        a(f'v_lshlrev_b32 v{r}, 16, v{r}')
        a(f'v_max_u32 v{e}, 134, v{e}')
        a(f'v_cvt_u32_f32 v{r}, v{r}')
        a(f'v_subrev_u32 v{e}, 134, v{e}')
        a(f'v_lshrrev_b32 v{r}, v{e}, v{r}')
        a(f'v_lshl_add_u32 v{r}, v{e}, 7, v{r}')
        a(f'v_lshl_add_u32 v{r}, v{r}, 2, s8')
        a(f'ds_read_b32 v{r}, v{r}')
    a('s_waitcnt lgkmcnt(0)')
    for j in range(4):
        a(f'v_cvt_pk_bf16_f32 v{32+j}, v{16+2*j}, v{17+2*j}')
    a('v_lshlrev_b32 v1, 4, v0')
    a('s_mul_i32 s6, s2, 4160')
    a('buffer_store_dwordx4 v[32:35], v1, s[60:63], s6 offen')
    a('v_cmp_gt_u32 vcc, 4, v0')
    a('s_and_saveexec_b64 s[4:5], vcc')
    a(f's_cbranch_execz {name}_kend')
    for j in range(4): a(f'v_mov_b32 v{40+j}, 0')
    a('s_add_u32 s6, s6, 4096')
    a('buffer_store_dwordx4 v[40:43], v1, s[60:63], s6 offen')
    a.label(f'{name}_kend')
    a('s_endpgm')

def gen_kgen3(name='kA_kgen_kernel'):
    a = Asm()
    a.raw(kernel_header(name))
    a('s_cmp_ge_u32 s2, 1024')
    a(f's_cbranch_scc1 {name}_end')
    body_kgen(a, name)
    a.label(f'{name}_end')
    a('s_endpgm')
    return a.text(), kernel_desc(name, 120, 100), f'; @launch kernel={name} grid=(1024,1,1) block=(256,1,1) lds={L_KGEN}'

if __name__ == '__main__':
    from kA2 import *
    build([gen_kgen3(), gen_utr(), gen_conv2(), gen_aout()], 't_A.s')
```

```python
from kA2 import *
def gen_conv3(name='kA_conv_kernel', waves=4, diag=False, fa=None):
    a = fa if fa is not None else Asm()
    if fa is None: a.raw(kernel_header(name))
    nwg = 1024 // waves
    a(f's_cmp_ge_u32 s2, {nwg}')
    a(f's_cbranch_scc1 {name}_end')
    a('s_load_dwordx2 s[22:23], s[0:1], 112')
    a('s_load_dwordx2 s[30:31], s[0:1], 96')
    a('s_load_dwordx2 s[36:37], s[0:1], 64')
    a('s_and_b32 s3, s2, 7')
    a('s_lshl_b32 s3, s3, 5')
    a('s_lshr_b32 s2, s2, 3')
    a('s_add_u32 s2, s2, s3')
    stamp(a, diag, 0)
    lane, wv = 1, 2
    a(f'v_and_b32 v{lane}, 63, v0')
    a(f'v_lshrrev_b32 v{wv}, 6, v0')
    a('s_waitcnt lgkmcnt(0)')
    srd(a, 4, 22, SZ_T, WS_UT)
    srd(a, 8, 30, 2048*2048*2)
    srd(a, 32, 36, 2048)
    srd(a, 12, 22, 1024*RSTR, WS_R)
    a(f's_mul_i32 s24, s2, {waves*4096}')
    a(f's_mul_i32 s25, s2, {waves*RSTR}')
    a('s_add_u32 s26, s25, 4096')
    a(f'v_lshlrev_b32 v4, 12, v{wv}')
    a(f'v_lshl_add_u32 v4, v{lane}, 4, v4')
    a('s_lshl_b32 s27, s2, 3')
    a(f'v_lshlrev_b32 v15, 1, v{wv}')
    a('buffer_load_ushort v15, v15, s[32:35], s27 offen')
    UR = 16
    for i in range(4):
        a(f'buffer_load_dwordx4 v[{UR+4*i}:{UR+3+4*i}], v4, s[4:7], s24 offen offset:{1024*i}')
    a(f'v_mul_u32_u24 v4, {RSTR}, v{wv}')
    a(f'v_lshl_add_u32 v4, v{lane}, 4, v4')
    XR = 32
    for i in range(5):
        if i == 4:
            a(f'v_cmp_gt_u32 vcc, 4, v{lane}')
            a('s_and_saveexec_b64 s[28:29], vcc')
        for sh in range(2):
            r = XR + 8*i + 4*sh
            if i < 4:
                a(f'buffer_load_dwordx4 v[{r}:{r+3}], v4, s[12:15], s25 offen offset:{1024*i + 4*sh}')
            else:
                a(f'buffer_load_dwordx4 v[{r}:{r+3}], v4, s[12:15], s26 offen offset:{4*sh}')
    a('s_mov_b64 exec, s[28:29]')
    a('v_mov_b32 v8, 0'); a('v_mov_b32 v9, 0')
    a(f'v_mul_u32_u24 v5, {CH_}, v{wv}')
    a(f'v_lshl_add_u32 v7, v{lane}, 3, v5')
    a(f'ds_write_b64 v7, v[8:9] offset:{2*4160}')
    a('s_and_saveexec_b64 s[28:29], vcc')
    a(f'ds_write_b64 v7, v[8:9] offset:{2*4160 + 512}')
    a('s_mov_b64 exec, s[28:29]')
    a(f'v_lshl_add_u32 v7, v{lane}, 4, v5')
    a('s_waitcnt vmcnt(10)')
    a('v_readfirstlane_b32 s38, v15')
    a(f'v_mul_u32_u24 v5, {CH_}, v{wv}')
    for i in range(4):
        a(f'ds_write_b128 v7, v[{UR+4*i}:{UR+3+4*i}] offset:{2*4160 + 544 + 1024*i}')
    for i in range(5):
        a(f's_waitcnt vmcnt({8 - 2*i})')
        if i == 4:
            a('s_and_saveexec_b64 s[28:29], vcc')
        X0, X2 = XR + 8*i, XR + 8*i + 4
        for j in range(4):
            a(f'v_alignbyte_b32 v{X2+j}, v{X2+j}, v{X0+j}, 2')
        a(f'ds_write_b128 v7, v[{X0}:{X0+3}] offset:{1024*i}')
        a(f'ds_write_b128 v7, v[{X2}:{X2+3}] offset:{4160 + 1024*i}')
    a('s_mov_b64 exec, s[28:29]')
    vA, vB = 4, 3
    a(f'v_and_b32 v8, 15, v{lane}')
    a(f'v_lshrrev_b32 v9, 5, v{lane}')
    a(f'v_bfe_u32 v10, v{lane}, 4, 1')
    a('v_lshlrev_b32 v11, 4, v9')
    a('v_add_u32 v11, v11, v8')
    a('v_lshlrev_b32 v12, 3, v10')
    a('v_sub_u32 v11, v12, v11')
    a(f'v_add_u32 v11, {2047 - 32*63}, v11')
    a('v_and_b32 v13, 1, v11')
    a('v_sub_u32 v11, v11, v13')
    a('v_mul_u32_u24 v13, 4160, v13')
    a('v_lshl_add_u32 v11, v11, 1, v13')
    a(f'v_add_u32 v14, v11, v5')
    a('v_lshlrev_b32 v11, 4, v8')
    a('v_lshlrev_b32 v13, 4, v9')
    a('v_sub_u32 v11, v11, v13')
    a('v_add_u32 v11, v11, v12')
    a('v_add_u32 v11, 16, v11')
    a(f'v_lshl_add_u32 v{vB}, v11, 1, v5')
    for q in range(4): a(f'v_add_u32 v{vA+q}, {1024*q}, v14')
    a('s_waitcnt lgkmcnt(0)')
    stamp(a, diag, 1)
    ACC = [8 + 4*b for b in range(8)]
    Bs = [[40 + 4*i for i in range(8)], [72 + 4*i for i in range(8)]]
    As = [[104 + 4*i for i in range(8)], [136 + 4*i for i in range(8)]]
    for b in range(8):
        for r in range(4): a(f'v_mov_b32 v{ACC[b]+r}, 0')
    def ldB(c0):
        s = c0 & 1
        for i in range(8):
            a(f'ds_read_b128 v[{Bs[s][i]}:{Bs[s][i]+3}], v{vB} offset:{2*4160 + 2*(256 + 256*i - 32*c0)}')
    def ldA(c0):
        s = c0 & 1
        for j in range(8):
            c = c0 + 8*j
            o = (63 - c)*16
            base = vA + o // 256; o = o % 256
            a(f'ds_read2_b32 v[{As[s][j]}:{As[s][j]+1}], v{base} offset0:{o} offset1:{o+1}')
            a(f'ds_read2_b32 v[{As[s][j]+2}:{As[s][j]+3}], v{base} offset0:{o+2} offset1:{o+3}')
            if j == 3: a('s_waitcnt lgkmcnt(7)')
    ldB(0); a('s_waitcnt lgkmcnt(7)'); ldA(0)
    a('s_waitcnt lgkmcnt(0)')
    for c0 in range(8):
        s = c0 & 1
        ml = [(j, b) for j in range(8) for b in range(j, 8)]
        if c0 < 7: ldB(c0+1)
        for idx, (j, b) in enumerate(ml):
            if idx == 12 and c0 < 7:
                a('s_waitcnt lgkmcnt(7)')
                ldA(c0+1)
            a(f'v_mfma_f32_16x16x32_bf16 v[{ACC[b]}:{ACC[b]+3}], v[{As[s][j]}:{As[s][j]+3}], v[{Bs[s][b-j]}:{Bs[s][b-j]+3}], v[{ACC[b]}:{ACC[b]+3}]')
        a('s_waitcnt lgkmcnt(0)')
    stamp(a, diag, 2)
    a('s_lshl_b32 s38, s38, 16')
    a(f'v_lshrrev_b32 v41, 4, v{lane}')
    a(f'v_and_b32 v40, 15, v{lane}')
    a('v_lshlrev_b32 v40, 4, v40')
    a('v_lshl_add_u32 v40, v41, 2, v40')
    a(f'v_mul_u32_u24 v42, {CH_}, v{wv}')
    a('v_lshl_add_u32 v42, v40, 1, v42')
    for b in range(8):
        a(f'ds_read_b64 v[{48+2*b}:{49+2*b}], v42 offset:{2*4160 + 544 + 512*b}')
    a(f'v_lshl_add_u32 v43, v40, 2, v{wv}')
    a('v_lshlrev_b32 v43, 1, v43')
    a('s_waitcnt lgkmcnt(0)')
    a('s_barrier')
    for b in range(8):
        for hf in range(2):
            u = 48 + 2*b + hf
            a(f'v_cvt_pk_bf16_f32 v64, v{ACC[b]+2*hf}, v{ACC[b]+2*hf+1}')
            a(f'v_lshlrev_b32 v65, 16, v{u}')
            a(f'v_and_b32 v66, 0xffff0000, v{u}')
            a(f'v_mul_f32 v65, s38, v65')
            a(f'v_mul_f32 v66, s38, v66')
            a(f'v_cvt_pk_bf16_f32 v65, v65, v66')
            a(f'v_lshlrev_b32 v66, 16, v65')
            a(f'v_and_b32 v67, 0xffff0000, v65')
            a(f'v_lshlrev_b32 v68, 16, v64')
            a(f'v_and_b32 v69, 0xffff0000, v64')
            a(f'v_add_f32 v66, v66, v68')
            a(f'v_add_f32 v67, v67, v69')
            a(f'v_cvt_pk_bf16_f32 v{70+hf}, v66, v67')
            a(f'ds_write_b16 v43, v{70+hf} offset:{(256*b + 2*hf)*8}')
            a(f'ds_write_b16_d16_hi v43, v{70+hf} offset:{(256*b + 2*hf + 1)*8}')
    a('s_waitcnt lgkmcnt(0)')
    a('s_barrier')
    a('v_lshlrev_b32 v40, 3, v0')
    for i in range(8):
        a(f'ds_read_b64 v[{48+2*i}:{49+2*i}], v40 offset:{i*2048}')
    a('v_lshlrev_b32 v41, 12, v0')
    a('s_waitcnt lgkmcnt(0)')
    for i in range(8):
        a(f's_add_u32 s39, s27, {i*256*4096}')
        a(f'buffer_store_dwordx2 v[{48+2*i}:{49+2*i}], v41, s[8:11], s39 offen')
    if diag:
        a('s_waitcnt vmcnt(0)')
        stamp(a, diag, 3)
        stamp_dump(a, 4, name)
    a.label(f'{name}_end')
    a('s_endpgm')
    return a.text(), kernel_desc(name, 168, 100), f'; @launch kernel={name} grid=({nwg},1,1) block=({64*waves},1,1) lds={waves*CH_}'
```

```python
from asmlib import *
from kB import *
from kA import stamp, stamp_dump

CB, CS = 1216, 72

def gen_col(name='kB_col_kernel', fa=None, diag=False):
    a = fa if fa is not None else Asm()
    k = K(a)
    if fa is None: a.raw(kernel_header(name))
    S_C8, S_C16 = 12, 14
    a('s_cmp_ge_u32 s2, 257')
    a(f's_cbranch_scc1 {name}_end')
    a('s_load_dwordx2 s[18:19], s[0:1], 112')
    stamp(a, diag, 0)
    consts(a, S_C8, S_C16)
    a(f's_mov_b32 s28, {f2u(2.0**-22):#x}'); a(f's_mov_b32 s29, {f2u(2.0**-22):#x}')
    X = list(range(8, 40, 2)); tmp = [40, 42]
    tw1 = {i: 44 + 2*(i-1) for i in range(1, 16)}
    tw2 = {i: 74 + 2*(i-1) for i in range(1, 16)}
    Wv = 104
    vt = 120
    vg, vw1, vr1, vr2, vwp = 123, 124, 125, 126, 127
    vT, vH = 6, 7
    a(f'v_and_b32 v{vT}, 127, v0')
    a(f'v_lshrrev_b32 v{vH}, 7, v0')
    a('s_waitcnt lgkmcnt(0)')
    srd(a, 4, 18, SZ_XT, WS_X1T)
    srd(a, 8, 18, SZ_XT, WS_Y1T)
    srd(a, 20, 18, SZ_WP, WS_WP)
    a(f'v_lshlrev_b32 v{vg}, 14, v{vH}')
    a(f'v_lshl_add_u32 v{vg}, v{vT}, 3, v{vg}')
    a('s_lshl_b32 s24, s2, 15')
    for q in range(4):
        a(f's_add_u32 s{30+q}, s24, {q*4096}')
    for n2 in range(16):
        a(f'buffer_load_dwordx2 {vp(X[n2])}, v{vg}, s[4:7], s{30 + n2//4} offen offset:{(n2%4)*1024}')
    a(f'v_lshlrev_b32 v{vwp}, 13, v{vH}')
    a(f'v_lshl_add_u32 v{vwp}, v{vT}, 6, v{vwp}')
    a('s_lshl_b32 s25, s2, 14')
    for q in range(4):
        a(f'buffer_load_dwordx4 v[{Wv+4*q}:{Wv+4*q+3}], v{vwp}, s[20:23], s25 offen offset:{16*q}')
    a(f'v_cvt_f32_u32 v{vt}, v{vT}')
    for i in range(1, 16):
        a(f'v_mul_f32 v{vt+1}, {f2u(-i/2048.):#x}, v{vt}')
        sincos(a, tw1[i], vt+1)
    a(f'v_and_b32 v{vt+2}, 7, v{vT}')
    a(f'v_cvt_f32_u32 v{vt}, v{vt+2}')
    for i in range(1, 16):
        a(f'v_mul_f32 v{vt+1}, {f2u(-i/128.):#x}, v{vt}')
        sincos(a, tw2[i], vt+1)
    a(f'v_mul_u32_u24 v{vH}, {16*CB}, v{vH}')
    a(f'v_lshl_add_u32 v{vw1}, v{vT}, 3, v{vH}')
    a(f'v_lshrrev_b32 v{vt}, 3, v{vT}')
    a(f'v_mul_u32_u24 v{vt}, {CB}, v{vt}')
    a(f'v_add_u32 v{vt}, v{vt}, v{vH}')
    a(f'v_lshl_add_u32 v{vr1}, v{vt+2}, 3, v{vt}')
    a(f'v_mul_u32_u24 v{vr2}, {CS}, v{vt+2}')
    a(f'v_add_u32 v{vr2}, v{vr2}, v{vt}')
    stamp(a, diag, 1)
    a('s_waitcnt vmcnt(4)')
    stamp(a, diag, 2)
    o = k.fft_regs(X, False, tmp, S_C8, S_C16)
    for i in range(1, 16): k.cmul(o[i], o[i], tw1[i], tmp[1])
    for i in range(16): a(f'ds_write_b64 v{vw1}, {vp(o[i])} offset:{i*CB}')
    a('s_waitcnt lgkmcnt(0)')
    a('s_barrier')
    for i in range(16): a(f'ds_read_b64 {vp(o[i])}, v{vr1} offset:{i*64}')
    a('s_waitcnt lgkmcnt(0)')
    o = k.fft_regs(o, False, tmp, S_C8, S_C16)
    for i in range(1, 16): k.cmul(o[i], o[i], tw2[i], tmp[1])
    for i in range(16): a(f'ds_write_b64 v{vr1}, {vp(o[i])} offset:{i*CS}')
    a('s_waitcnt lgkmcnt(0)')
    for h in range(2):
        for n0 in range(8):
            a(f'ds_read_b64 {vp(o[8*h+n0])}, v{vr2} offset:{h*8*CS + n0*8}')
    a('s_waitcnt lgkmcnt(0)')
    hs = [k.fft_regs(o[8*h:8*h+8], False, tmp, S_C8, S_C16) for h in range(2)]
    stamp(a, diag, 3)
    a('s_waitcnt vmcnt(0)')
    wt = vt
    for h in range(2):
        for k2 in range(8):
            w = Wv + 8*h + k2
            a(f'v_lshlrev_b32 v{wt}, 16, v{w}')
            a(f'v_and_b32 v{wt+1}, 0xffff0000, v{w}')
            a(f'v_pk_mul_f32 {vp(wt)}, {vp(wt)}, s[28:29]')
            k.cmul(hs[h][k2], hs[h][k2], wt, tmp[1])
    stamp(a, diag, 4)
    hs = [k.fft_regs(hs[h], True, tmp, S_C8, S_C16) for h in range(2)]
    for h in range(2):
        for n0 in range(8):
            a(f'ds_write_b64 v{vr2}, {vp(hs[h][n0])} offset:{h*8*CS + n0*8}')
    o = hs[0] + hs[1]
    a('s_waitcnt lgkmcnt(0)')
    for i in range(16): a(f'ds_read_b64 {vp(o[i])}, v{vr1} offset:{i*CS}')
    a('s_waitcnt lgkmcnt(0)')
    for i in range(1, 16): k.cmul(o[i], o[i], tw2[i], tmp[1], conj=True)
    o = k.fft_regs(o, True, tmp, S_C8, S_C16)
    for i in range(16): a(f'ds_write_b64 v{vr1}, {vp(o[i])} offset:{i*64}')
    a('s_waitcnt lgkmcnt(0)')
    a('s_barrier')
    for i in range(16): a(f'ds_read_b64 {vp(o[i])}, v{vw1} offset:{i*CB}')
    a('s_waitcnt lgkmcnt(0)')
    for i in range(1, 16): k.cmul(o[i], o[i], tw1[i], tmp[1], conj=True)
    o = k.fft_regs(o, True, tmp, S_C8, S_C16)
    stamp(a, diag, 5)
    for n2 in range(16):
        a(f'buffer_store_dwordx2 {vp(o[n2])}, v{vg}, s[8:11], s{30 + n2//4} offen offset:{(n2%4)*1024}')
    if diag:
        a('s_waitcnt vmcnt(0)')
        stamp(a, diag, 6)
        stamp_dump(a, 7, name)
    a.label(f'{name}_end')
    a('s_endpgm')
    return a.text(), kernel_desc(name, 128, 100), f'; @launch kernel={name} grid=(257,1,1) block=(256,1,1) lds={32*CB}'

def gen_wprep(name='kB_wprep_kernel', fa=None):
    a = fa if fa is not None else Asm()
    if fa is None: a.raw(kernel_header(name))
    a('s_cmp_ge_u32 s2, 144')
    a(f's_cbranch_scc1 {name}_end')
    a('s_load_dwordx2 s[16:17], s[0:1], 80')
    a('s_load_dwordx2 s[18:19], s[0:1], 88')
    a('s_load_dwordx2 s[24:25], s[0:1], 112')
    a('s_and_b32 s26, s2, 15')
    a('s_lshr_b32 s27, s2, 4')
    lane, wv = 1, 2
    a(f'v_and_b32 v{lane}, 63, v0')
    a(f'v_lshrrev_b32 v{wv}, 6, v0')
    a('s_waitcnt lgkmcnt(0)')
    srd(a, 4, 16, 2048*513*2)
    srd(a, 8, 18, 2048*513*2)
    srd(a, 12, 24, SZ_WP, WS_WP)
    vg, vl = 3, 4
    a('s_mul_i32 s28, s26, 1026')
    a('s_lshl_b32 s29, s27, 7')
    a('s_add_u32 s28, s28, s29')
    a(f'v_mul_u32_u24 v{vg}, {16*1026}, v{wv}')
    a(f'v_lshl_add_u32 v{vg}, v{lane}, 1, v{vg}')
    a(f'v_mul_u32_u24 v{vl}, 516, v{lane}')
    a(f'v_lshl_add_u32 v{vl}, v{wv}, 6, v{vl}')
    for i0 in range(0, 32, 8):
        for j in range(8):
            i = i0 + j
            a(f's_add_u32 s30, s28, {i*64*1026}')
            a(f'buffer_load_ushort v{8+j}, v{vg}, s[4:7], s30 offen')
            a(f'buffer_load_ushort v{16+j}, v{vg}, s[8:11], s30 offen')
        a('s_waitcnt vmcnt(0)')
        for j in range(8):
            i = i0 + j
            a(f'v_lshl_or_b32 v{8+j}, v{16+j}, 16, v{8+j}')
            p = (4*(i & 1))*16 + ((i & 3) >> 1)*8 + (i >> 2)
            a(f'ds_write_b32 v{vl}, v{8+j} offset:{p*4}')
    a('s_waitcnt lgkmcnt(0)')
    a('s_barrier')
    vr, vo = 5, 6
    a(f'v_lshrrev_b32 v7, 5, v0')
    a(f'v_and_b32 v24, 31, v0')
    a(f'v_mul_u32_u24 v{vr}, 516, v7')
    a(f'v_lshl_add_u32 v{vr}, v24, 4, v{vr}')
    a(f'v_lshlrev_b32 v{vo}, 13, v7')
    a(f'v_lshl_add_u32 v{vo}, v24, 4, v{vo}')
    a('s_lshl_b32 s28, s27, 19')
    a('s_lshl_b32 s29, s26, 9')
    a('s_add_u32 s28, s28, s29')
    for i in range(8):
        a(f'ds_read_b128 v[{32+4*i}:{35+4*i}], v{vr} offset:{i*8*516}')
    a('s_waitcnt lgkmcnt(0)')
    for i in range(8):
        a(f's_add_u32 s30, s28, {i*8*8192}')
        a(f'buffer_store_dwordx4 v[{32+4*i}:{35+4*i}], v{vo}, s[12:15], s30 offen')
    a.label(f'{name}_end')
    a('s_endpgm')
    return a.text(), kernel_desc(name, 64), f'; @launch kernel={name} grid=(144,1,1) block=(256,1,1) lds={64*516}'

def gen_irow(name='kB_irow_kernel', fa=None):
    a = fa if fa is not None else Asm()
    k = K(a)
    if fa is None: a.raw(kernel_header(name))
    S_C8, S_C16 = 12, 14
    a('s_cmp_ge_u32 s2, 256')
    a(f's_cbranch_scc1 {name}_end')
    a('s_load_dwordx2 s[16:17], s[0:1], 96')
    a('s_load_dwordx2 s[18:19], s[0:1], 112')
    consts(a, S_C8, S_C16)
    lane, wv = 1, 2
    a(f'v_and_b32 v{lane}, 63, v0')
    a(f'v_lshrrev_b32 v{wv}, 6, v0')
    a('s_waitcnt lgkmcnt(0)')
    srd(a, 4, 16, 2048*2048*2)
    srd(a, 8, 18, SZ_XT, WS_Y1T)
    row, f0, vL, vO = 8, 9, 10, 11
    a(f'v_and_b32 v{row}, 7, v0')
    a(f'v_lshrrev_b32 v{f0}, 3, v0')
    a(f'v_mul_u32_u24 v{vL}, {RS}, v{row}')
    a(f'v_lshl_add_u32 v{vL}, v{f0}, 3, v{vL}')
    a(f'v_lshlrev_b32 v{vO}, 14, v{f0}')
    a(f'v_lshl_add_u32 v{vO}, v{row}, 3, v{vO}')
    a(f's_lshl_b32 s20, s2, 6')
    a(f'v_add_u32 v{vO}, s20, v{vO}')
    for i in range(16):
        a(f's_mov_b32 s21, {i*32*16384}')
        a(f'buffer_load_dwordx2 {vp(16+2*i)}, v{vO}, s[8:11], s21 offen')
    a(f's_mov_b32 s21, {16*32*16384}')
    a(f'buffer_load_dwordx2 {vp(48)}, v{vO}, s[8:11], s21 offen')
    a('s_waitcnt vmcnt(0)')
    a(f'v_cmp_gt_u32 vcc, 8, v0')
    a(f'v_cndmask_b32 v17, v17, 0, vcc')
    a(f'v_mov_b32 v49, 0')
    for i in range(16):
        a(f'ds_write_b64 v{vL}, {vp(16+2*i)} offset:{i*256}')
    a('s_and_saveexec_b64 s[22:23], vcc')
    a(f'ds_write_b64 v{vL}, {vp(48)} offset:4096')
    a('s_mov_b64 exec, s[22:23]')
    a('s_waitcnt lgkmcnt(0)')
    a('s_barrier')
    RA = list(range(8, 24, 2)); RB = list(range(24, 40, 2))
    tmp = [40, 42]
    tw1 = {i: 44 + 2*(i-1) for i in range(1, 8)}
    tw2 = {i: 58 + 2*(i-1) for i in range(1, 8)}
    vt = 72
    vw1, vr1, vw2, vr2, vrb = 76, 77, 78, 79, 80
    vB = 81; vg = 82
    a(f'v_mul_u32_u24 v{vrb}, {2*RS}, v{wv}')
    fft512_setup(a, lane, tw1, tw2, vt, vw1, vr1, vw2, vr2, vrb)
    a(f'v_lshlrev_b32 v{vB}, 3, v{lane}')
    a(f'v_sub_u32 v{vB}, v{vrb}, v{vB}')
    a(f'v_cvt_f32_u32 v{vt}, v{lane}')
    a(f'v_mul_f32 v{vt}, {f2u(1/1024.):#x}, v{vt}')
    Bt = [84, 86]; Wt = 88; Tt = 90
    for j in range(8):
        for r, R in enumerate((RA, RB)):
            a(f'ds_read_b64 {vp(R[j])}, v{vw1} offset:{r*RS + j*512}')
            a(f'ds_read_b64 {vp(Bt[r])}, v{vB} offset:{r*RS + 4096 - j*512}')
        a(f'v_add_f32 v{vt+1}, {f2u(j/16.):#x}, v{vt}')
        sincos(a, Wt, vt+1)
        a('s_waitcnt lgkmcnt(0)')
        for r, R in enumerate((RA, RB)):
            A, B = R[j], Bt[r]
            a(f'v_pk_add_f32 {vp(Tt)}, {vp(A)}, {vp(B)} neg_lo:[0,1]')
            a(f'v_pk_add_f32 {vp(A)}, {vp(A)}, {vp(B)} neg_hi:[0,1]')
            k.cmul(B, Tt, Wt, tmp[0])
            a(f'v_pk_add_f32 {vp(A)}, {vp(A)}, {vp(B)} op_sel:[0,1] op_sel_hi:[1,0] neg_lo:[0,1]')
    outs = fft512_wave(a, k, [(RA, 0), (RB, RS)], tw1, tw2, tmp, vw1, vr1, vw2, vr2, True, S_C8, S_C16)
    a(f'v_lshlrev_b32 v{vg}, 13, v{wv}')
    a(f'v_lshl_add_u32 v{vg}, v{lane}, 2, v{vg}')
    a('s_lshl_b32 s20, s2, 15')
    a('s_add_u32 s21, s20, 4096')
    for r, o in enumerate(outs):
        for j in range(8):
            a(f'v_cvt_pk_bf16_f32 v{o[j]}, v{o[j]}, v{o[j]+1}')
            a(f'buffer_store_dword v{o[j]}, v{vg}, s[4:7], s{20+r} offen offset:{2048 + j*256}')
    a.label(f'{name}_end')
    a('s_endpgm')
    return a.text(), kernel_desc(name, 96), f'; @launch kernel={name} grid=(256,1,1) block=(256,1,1) lds={8*RS}'

if __name__ == '__main__':
    build([gen_row(), gen_wprep(), gen_col(diag=True), gen_irow()], 't_B.s')
```

```python
from kB import *
from kB2 import *
from kA2 import *
from kA4 import *
from kA5 import *
import sys

def fused(name, roles, vgpr, lds, diag=None):
    a = Asm()
    a.raw(kernel_header(name))
    if diag is not None:
        a('s_memrealtime s[96:97]')
        a('s_mov_b32 s98, s2')
    cum = 0
    for i, (cnt, emit) in enumerate(roles):
        cum += cnt
        a(f's_cmp_lt_u32 s2, {cum}')
        a(f's_cbranch_scc1 {name}_r{i}')
    a('s_endpgm')
    cum = 0
    for i, (cnt, emit) in enumerate(roles):
        a.label(f'{name}_r{i}')
        if cum: a(f's_sub_u32 s2, s2, {cum}')
        emit(a, f'{name}_b{i}')
        cum += cnt
    if diag is not None:
        a.lines = [l.replace('s_endpgm', f's_branch {name}_fin') for l in a.lines]
        a.label(f'{name}_fin')
        a('s_waitcnt vmcnt(0) lgkmcnt(0)')
        a('s_memrealtime s[94:95]')
        a('s_load_dwordx2 s[88:89], s[0:1], 112')
        a('s_waitcnt lgkmcnt(0)')
        a(f's_add_u32 s88, s88, {0x4000000 + diag*0x100000}')
        a('s_addc_u32 s89, s89, 0')
        a('s_and_b32 s89, s89, 0xffff')
        a('s_mov_b32 s90, 0x100000')
        a('s_mov_b32 s91, 0x00020000')
        a('s_mov_b64 exec, 1')
        a('v_mov_b32 v0, s96'); a('v_mov_b32 v1, s97'); a('v_mov_b32 v2, s94'); a('v_mov_b32 v3, s95')
        a('s_lshl_b32 s98, s98, 4')
        a('v_mov_b32 v4, s98')
        a('buffer_store_dwordx4 v[0:3], v4, s[88:91], 0 offen')
        a('s_endpgm')
    return a.text(), kernel_desc(name, vgpr, 100), f'; @launch kernel={name} grid=({cum},1,1) block=(256,1,1) lds={lds}'

def kgen_off(a, n, off):
    if off: a(f's_add_u32 s2, s2, {off}')
    body_kgen(a, n)

def build_final(out, diag=False):
    L1 = fused('k1_kernel', [(144, lambda a, n: gen_wprep(n, fa=a)), (256, lambda a, n: gen_row(n, fa=a)),
                             (512, lambda a, n: kgen_off(a, n, 0)), (512, lambda a, n: gen_utr(n, fa=a))], 120, 8*RS, 0 if diag else None)
    L2 = fused('k2_kernel', [(257, lambda a, n: gen_col(n, fa=a)), (512, lambda a, n: kgen_off(a, n, 512))], 128, 32*CB, 1 if diag else None)
    L3 = fused('k3_kernel', [(256, lambda a, n: gen_conv3(n, fa=a)), (256, lambda a, n: gen_irow(n, fa=a))], 168, 4*CH_, 2 if diag else None)
    build([L1, L2, L3], out)

if __name__ == '__main__':
    build_final(sys.argv[1] if len(sys.argv) > 1 else 't_all.s', len(sys.argv) > 2)
```

```python
from asmlib import *
from kB import *
from kA import stamp, stamp_dump

CB, CS = 1216, 72

def gen_col(name='kB_col_kernel', fa=None, diag=False):
    a = fa if fa is not None else Asm()
    k = K(a)
    if fa is None: a.raw(kernel_header(name))
    S_C8, S_C16 = 12, 14
    a('s_cmp_ge_u32 s2, 257')
    a(f's_cbranch_scc1 {name}_end')
    a('s_load_dwordx2 s[18:19], s[0:1], 112')
    stamp(a, diag, 0)
    consts(a, S_C8, S_C16)
    a(f's_mov_b32 s28, {f2u(2.0**-22):#x}'); a(f's_mov_b32 s29, {f2u(2.0**-22):#x}')
    X = list(range(8, 40, 2)); tmp = [40, 42]
    tw1 = {i: 44 + 2*(i-1) for i in range(1, 16)}
    tw2 = {i: 74 + 2*(i-1) for i in range(1, 16)}
    Wv = 104
    vt = 120
    vg, vw1, vr1, vr2, vwp = 123, 124, 125, 126, 127
    vT, vH = 6, 7
    a(f'v_and_b32 v{vT}, 127, v0')
    a(f'v_lshrrev_b32 v{vH}, 7, v0')
    a('s_waitcnt lgkmcnt(0)')
    srd(a, 4, 18, SZ_XT, WS_X1T)
    srd(a, 8, 18, SZ_XT, WS_Y1T)
    srd(a, 20, 18, SZ_WP, WS_WP)
    a(f'v_lshlrev_b32 v{vg}, 14, v{vH}')
    a(f'v_lshl_add_u32 v{vg}, v{vT}, 3, v{vg}')
    a('s_lshl_b32 s24, s2, 15')
    for q in range(4):
        a(f's_add_u32 s{30+q}, s24, {q*4096}')
    for n2 in range(16):
        a(f'buffer_load_dwordx2 {vp(X[n2])}, v{vg}, s[4:7], s{30 + n2//4} offen offset:{(n2%4)*1024}')
    a(f'v_lshlrev_b32 v{vwp}, 13, v{vH}')
    a(f'v_lshl_add_u32 v{vwp}, v{vT}, 6, v{vwp}')
    a('s_lshl_b32 s25, s2, 14')
    for q in range(4):
        a(f'buffer_load_dwordx4 v[{Wv+4*q}:{Wv+4*q+3}], v{vwp}, s[20:23], s25 offen offset:{16*q}')
    a(f'v_cvt_f32_u32 v{vt}, v{vT}')
    for i in range(1, 16):
        a(f'v_mul_f32 v{vt+1}, {f2u(-i/2048.):#x}, v{vt}')
        sincos(a, tw1[i], vt+1)
    a(f'v_and_b32 v{vt+2}, 7, v{vT}')
    a(f'v_cvt_f32_u32 v{vt}, v{vt+2}')
    for i in range(1, 16):
        a(f'v_mul_f32 v{vt+1}, {f2u(-i/128.):#x}, v{vt}')
        sincos(a, tw2[i], vt+1)
    a(f'v_mul_u32_u24 v{vH}, {16*CB}, v{vH}')
    a(f'v_lshl_add_u32 v{vw1}, v{vT}, 3, v{vH}')
    a(f'v_lshrrev_b32 v{vt}, 3, v{vT}')
    a(f'v_mul_u32_u24 v{vt}, {CB}, v{vt}')
    a(f'v_add_u32 v{vt}, v{vt}, v{vH}')
    a(f'v_lshl_add_u32 v{vr1}, v{vt+2}, 3, v{vt}')
    a(f'v_mul_u32_u24 v{vr2}, {CS}, v{vt+2}')
    a(f'v_add_u32 v{vr2}, v{vr2}, v{vt}')
    stamp(a, diag, 1)
    a('s_waitcnt vmcnt(4)')
    stamp(a, diag, 2)
    o = k.fft_regs(X, False, tmp, S_C8, S_C16)
    for i in range(1, 16): k.cmul(o[i], o[i], tw1[i], tmp[1])
    for i in range(16): a(f'ds_write_b64 v{vw1}, {vp(o[i])} offset:{i*CB}')
    a('s_waitcnt lgkmcnt(0)')
    a('s_barrier')
    for i in range(16): a(f'ds_read_b64 {vp(o[i])}, v{vr1} offset:{i*64}')
    a('s_waitcnt lgkmcnt(0)')
    o = k.fft_regs(o, False, tmp, S_C8, S_C16)
    for i in range(1, 16): k.cmul(o[i], o[i], tw2[i], tmp[1])
    for i in range(16): a(f'ds_write_b64 v{vr1}, {vp(o[i])} offset:{i*CS}')
    a('s_waitcnt lgkmcnt(0)')
    for h in range(2):
        for n0 in range(8):
            a(f'ds_read_b64 {vp(o[8*h+n0])}, v{vr2} offset:{h*8*CS + n0*8}')
    a('s_waitcnt lgkmcnt(0)')
    hs = [k.fft_regs(o[8*h:8*h+8], False, tmp, S_C8, S_C16) for h in range(2)]
    stamp(a, diag, 3)
    a('s_waitcnt vmcnt(0)')
    wt = vt
    for h in range(2):
        for k2 in range(8):
            w = Wv + 8*h + k2
            a(f'v_lshlrev_b32 v{wt}, 16, v{w}')
            a(f'v_and_b32 v{wt+1}, 0xffff0000, v{w}')
            a(f'v_pk_mul_f32 {vp(wt)}, {vp(wt)}, s[28:29]')
            k.cmul(hs[h][k2], hs[h][k2], wt, tmp[1])
    stamp(a, diag, 4)
    hs = [k.fft_regs(hs[h], True, tmp, S_C8, S_C16) for h in range(2)]
    for h in range(2):
        for n0 in range(8):
            a(f'ds_write_b64 v{vr2}, {vp(hs[h][n0])} offset:{h*8*CS + n0*8}')
    o = hs[0] + hs[1]
    a('s_waitcnt lgkmcnt(0)')
    for i in range(16): a(f'ds_read_b64 {vp(o[i])}, v{vr1} offset:{i*CS}')
    a('s_waitcnt lgkmcnt(0)')
    for i in range(1, 16): k.cmul(o[i], o[i], tw2[i], tmp[1], conj=True)
    o = k.fft_regs(o, True, tmp, S_C8, S_C16)
    for i in range(16): a(f'ds_write_b64 v{vr1}, {vp(o[i])} offset:{i*64}')
    a('s_waitcnt lgkmcnt(0)')
    a('s_barrier')
    for i in range(16): a(f'ds_read_b64 {vp(o[i])}, v{vw1} offset:{i*CB}')
    a('s_waitcnt lgkmcnt(0)')
    for i in range(1, 16): k.cmul(o[i], o[i], tw1[i], tmp[1], conj=True)
    o = k.fft_regs(o, True, tmp, S_C8, S_C16)
    stamp(a, diag, 5)
    for n2 in range(16):
        a(f'buffer_store_dwordx2 {vp(o[n2])}, v{vg}, s[8:11], s{30 + n2//4} offen offset:{(n2%4)*1024}')
    if diag:
        a('s_waitcnt vmcnt(0)')
        stamp(a, diag, 6)
        stamp_dump(a, 7, name)
    a.label(f'{name}_end')
    a('s_endpgm')
    return a.text(), kernel_desc(name, 128, 100), f'; @launch kernel={name} grid=(257,1,1) block=(256,1,1) lds={32*CB}'

def gen_wprep(name='kB_wprep_kernel', fa=None):
    a = fa if fa is not None else Asm()
    if fa is None: a.raw(kernel_header(name))
    a('s_cmp_ge_u32 s2, 144')
    a(f's_cbranch_scc1 {name}_end')
    a('s_load_dwordx2 s[16:17], s[0:1], 80')
    a('s_load_dwordx2 s[18:19], s[0:1], 88')
    a('s_load_dwordx2 s[24:25], s[0:1], 112')
    a('s_and_b32 s26, s2, 15')
    a('s_lshr_b32 s27, s2, 4')
    lane, wv = 1, 2
    a(f'v_and_b32 v{lane}, 63, v0')
    a(f'v_lshrrev_b32 v{wv}, 6, v0')
    a('s_waitcnt lgkmcnt(0)')
    srd(a, 4, 16, 2048*513*2)
    srd(a, 8, 18, 2048*513*2)
    srd(a, 12, 24, SZ_WP, WS_WP)
    vg, vl = 3, 4
    a('s_mul_i32 s28, s26, 1026')
    a('s_lshl_b32 s29, s27, 7')
    a('s_add_u32 s28, s28, s29')
    a(f'v_mul_u32_u24 v{vg}, {16*1026}, v{wv}')
    a(f'v_lshl_add_u32 v{vg}, v{lane}, 1, v{vg}')
    a(f'v_mul_u32_u24 v{vl}, 516, v{lane}')
    a(f'v_lshl_add_u32 v{vl}, v{wv}, 6, v{vl}')
    for i in range(32):
        a(f's_add_u32 s30, s28, {i*64*1026}')
        a(f'buffer_load_ushort v{8+i}, v{vg}, s[4:7], s30 offen')
        a(f'buffer_load_ushort v{40+i}, v{vg}, s[8:11], s30 offen')
    for i in range(32):
        a(f's_waitcnt vmcnt({62 - 2*i})')
        a(f'v_lshl_or_b32 v{8+i}, v{40+i}, 16, v{8+i}')
        p = (4*(i & 1))*16 + ((i & 3) >> 1)*8 + (i >> 2)
        a(f'ds_write_b32 v{vl}, v{8+i} offset:{p*4}')
    a('s_waitcnt lgkmcnt(0)')
    a('s_barrier')
    vr, vo = 5, 6
    a(f'v_lshrrev_b32 v7, 5, v0')
    a(f'v_and_b32 v24, 31, v0')
    a(f'v_mul_u32_u24 v{vr}, 516, v7')
    a(f'v_lshl_add_u32 v{vr}, v24, 4, v{vr}')
    a(f'v_lshlrev_b32 v{vo}, 13, v7')
    a(f'v_lshl_add_u32 v{vo}, v24, 4, v{vo}')
    a('s_lshl_b32 s28, s27, 19')
    a('s_lshl_b32 s29, s26, 9')
    a('s_add_u32 s28, s28, s29')
    for i in range(8):
        a(f'ds_read_b128 v[{32+4*i}:{35+4*i}], v{vr} offset:{i*8*516}')
    a('s_waitcnt lgkmcnt(0)')
    for i in range(8):
        a(f's_add_u32 s30, s28, {i*8*8192}')
        a(f'buffer_store_dwordx4 v[{32+4*i}:{35+4*i}], v{vo}, s[12:15], s30 offen')
    a.label(f'{name}_end')
    a('s_endpgm')
    return a.text(), kernel_desc(name, 72), f'; @launch kernel={name} grid=(144,1,1) block=(256,1,1) lds={64*516}'

def gen_irow(name='kB_irow_kernel', fa=None):
    a = fa if fa is not None else Asm()
    k = K(a)
    if fa is None: a.raw(kernel_header(name))
    S_C8, S_C16 = 12, 14
    a('s_cmp_ge_u32 s2, 256')
    a(f's_cbranch_scc1 {name}_end')
    a('s_load_dwordx2 s[16:17], s[0:1], 96')
    a('s_load_dwordx2 s[18:19], s[0:1], 112')
    consts(a, S_C8, S_C16)
    lane, wv = 1, 2
    a(f'v_and_b32 v{lane}, 63, v0')
    a(f'v_lshrrev_b32 v{wv}, 6, v0')
    a('s_waitcnt lgkmcnt(0)')
    srd(a, 4, 16, 2048*2048*2)
    srd(a, 8, 18, SZ_XT, WS_Y1T)
    row, f0, vL, vO = 8, 9, 10, 11
    a(f'v_and_b32 v{row}, 7, v0')
    a(f'v_lshrrev_b32 v{f0}, 3, v0')
    a(f'v_mul_u32_u24 v{vL}, {RS}, v{row}')
    a(f'v_lshl_add_u32 v{vL}, v{f0}, 3, v{vL}')
    a(f'v_lshlrev_b32 v{vO}, 14, v{f0}')
    a(f'v_lshl_add_u32 v{vO}, v{row}, 3, v{vO}')
    a(f's_lshl_b32 s20, s2, 6')
    a(f'v_add_u32 v{vO}, s20, v{vO}')
    for i in range(16):
        a(f's_mov_b32 s21, {i*32*16384}')
        a(f'buffer_load_dwordx2 {vp(16+2*i)}, v{vO}, s[8:11], s21 offen')
    a(f's_mov_b32 s21, {16*32*16384}')
    a(f'buffer_load_dwordx2 {vp(48)}, v{vO}, s[8:11], s21 offen')
    a('s_waitcnt vmcnt(0)')
    a(f'v_cmp_gt_u32 vcc, 8, v0')
    a(f'v_cndmask_b32 v17, v17, 0, vcc')
    a(f'v_mov_b32 v49, 0')
    for i in range(16):
        a(f'ds_write_b64 v{vL}, {vp(16+2*i)} offset:{i*256}')
    a('s_and_saveexec_b64 s[22:23], vcc')
    a(f'ds_write_b64 v{vL}, {vp(48)} offset:4096')
    a('s_mov_b64 exec, s[22:23]')
    a('s_waitcnt lgkmcnt(0)')
    a('s_barrier')
    RA = list(range(8, 24, 2)); RB = list(range(24, 40, 2))
    tmp = [40, 42]
    tw1 = {i: 44 + 2*(i-1) for i in range(1, 8)}
    tw2 = {i: 58 + 2*(i-1) for i in range(1, 8)}
    vt = 72
    vw1, vr1, vw2, vr2, vrb = 76, 77, 78, 79, 80
    vB = 81; vg = 82
    a(f'v_mul_u32_u24 v{vrb}, {2*RS}, v{wv}')
    fft512_setup(a, lane, tw1, tw2, vt, vw1, vr1, vw2, vr2, vrb)
    a(f'v_lshlrev_b32 v{vB}, 3, v{lane}')
    a(f'v_sub_u32 v{vB}, v{vrb}, v{vB}')
    a(f'v_cvt_f32_u32 v{vt}, v{lane}')
    a(f'v_mul_f32 v{vt}, {f2u(1/1024.):#x}, v{vt}')
    Bt = [84, 86]; Wt = 88; Tt = 90
    for j in range(8):
        for r, R in enumerate((RA, RB)):
            a(f'ds_read_b64 {vp(R[j])}, v{vw1} offset:{r*RS + j*512}')
            a(f'ds_read_b64 {vp(Bt[r])}, v{vB} offset:{r*RS + 4096 - j*512}')
        a(f'v_add_f32 v{vt+1}, {f2u(j/16.):#x}, v{vt}')
        sincos(a, Wt, vt+1)
        a('s_waitcnt lgkmcnt(0)')
        for r, R in enumerate((RA, RB)):
            A, B = R[j], Bt[r]
            a(f'v_pk_add_f32 {vp(Tt)}, {vp(A)}, {vp(B)} neg_lo:[0,1]')
            a(f'v_pk_add_f32 {vp(A)}, {vp(A)}, {vp(B)} neg_hi:[0,1]')
            k.cmul(B, Tt, Wt, tmp[0])
            a(f'v_pk_add_f32 {vp(A)}, {vp(A)}, {vp(B)} op_sel:[0,1] op_sel_hi:[1,0] neg_lo:[0,1]')
    outs = fft512_wave(a, k, [(RA, 0), (RB, RS)], tw1, tw2, tmp, vw1, vr1, vw2, vr2, True, S_C8, S_C16)
    a(f'v_lshlrev_b32 v{vg}, 13, v{wv}')
    a(f'v_lshl_add_u32 v{vg}, v{lane}, 2, v{vg}')
    a('s_lshl_b32 s20, s2, 15')
    a('s_add_u32 s21, s20, 4096')
    for r, o in enumerate(outs):
        for j in range(8):
            a(f'v_cvt_pk_bf16_f32 v{o[j]}, v{o[j]}, v{o[j]+1}')
            a(f'buffer_store_dword v{o[j]}, v{vg}, s[4:7], s{20+r} offen offset:{2048 + j*256}')
    a.label(f'{name}_end')
    a('s_endpgm')
    return a.text(), kernel_desc(name, 96), f'; @launch kernel={name} grid=(256,1,1) block=(256,1,1) lds={8*RS}'

if __name__ == '__main__':
    build([gen_row(), gen_wprep(), gen_col(diag=True), gen_irow()], 't_B.s')
```
